```python
import torch

def _softmax(x, axis=-1):
    return torch.softmax(x, dim=axis)
def _gelu(x):
    return torch.nn.functional.gelu(x, approximate="tanh")
def _silu(x):
    return torch.nn.functional.silu(x)
def _sigmoid(x):
    return torch.sigmoid(x)
def _layernorm(x, axis=-1, eps=1e-5):
    m = x.mean(dim=axis, keepdim=True)
    v = x.var(dim=axis, keepdim=True, unbiased=False)
    return (x - m) / torch.sqrt(v + eps)
def _scatter_add(tgt, idx, src, axis=0):
    return tgt.clone().index_add_(axis, idx, src)
def _segment_sum(src, seg, n):
    out = torch.zeros((n,) + src.shape[1:], dtype=src.dtype)
    return out.index_add_(0, seg, src)
def _pad(x, pw):
    flat = tuple(v for pair in reversed(pw) for v in pair)
    return torch.nn.functional.pad(x, flat)

kernel_name = 'interleave_layers__mha_block_cached__dense_activation_silu__decode'

def setup_inputs():

    _w = (lambda a: (lambda t: t.to(torch.bfloat16) if t.is_floating_point() else t)(torch.as_tensor(a)))
    def _A_setup():
        B, Sq, D = 8, 1, 512
        H, Sk, Dh = 32, 4096, 128
        return {
            "x": _w((lambda *s: torch.randn(*s, dtype=torch.bfloat16) * 0.1)(B, Sq, D)),
            "k_cache": _w((lambda *s: torch.randn(*s, dtype=torch.bfloat16) * 0.8)(B, H, Sk, Dh)),
            "v_cache": _w((lambda *s: torch.randn(*s, dtype=torch.bfloat16) * 3.2)(B, H, Sk, Dh)),
            "wq": _w((lambda *s: torch.randn(*s, dtype=torch.bfloat16) * 0.8)(D, H * Dh) * (D ** -0.5)),
            "wo": _w((lambda *s: torch.randn(*s, dtype=torch.bfloat16) * 3.2)(H * Dh, D) * ((H * Dh) ** -0.5)),
        }
    _A_in = _A_setup()

    def _B_setup():
        B, S, D, F = 8, 1, 512, 1792
        return {
            "x": _w((lambda *s: torch.randn(*s, dtype=torch.bfloat16) * 0.1)(B, S, D)),
            "w1": _w((lambda *s: torch.randn(*s, dtype=torch.bfloat16) * 1.6)(D, F) * (D ** -0.5)),
            "w2": _w((lambda *s: torch.randn(*s, dtype=torch.bfloat16) * 0.4)(F, D) * (F ** -0.5)),
        }
    _B_in = _B_setup()

    return {
        "A_x": _A_in["x"],
        "A_k_cache": _A_in["k_cache"],
        "A_v_cache": _A_in["v_cache"],
        "A_wq": _A_in["wq"],
        "A_wo": _A_in["wo"],
        "B_x": _B_in["x"],
        "B_w1": _B_in["w1"],
        "B_w2": _B_in["w2"],
    }

def reference(A_x, A_k_cache, A_v_cache, A_wq, A_wo, B_x, B_w1, B_w2):
    def _A_ref(x, k_cache, v_cache, wq, wo):
        B, Sq, D = x.shape
        H, Dh = 32, 128
        q = (lambda x, *d: x.permute(*d))((x @ wq).reshape(B, Sq, H, Dh), 0, 2, 1, 3)
        scores = torch.einsum("bhqd,bhkd->bhqk", q, k_cache) * (Dh ** -0.5)
        p = _softmax(scores, axis=-1)
        o = torch.einsum("bhqk,bhkd->bhqd", p, v_cache)
        return (lambda x, *d: x.permute(*d))(o, 0, 2, 1, 3).reshape(B, Sq, H * Dh) @ wo

    def _B_ref(x, w1, w2):
        h = torch.einsum("bsd,df->bsf", x, w1)
        h = _silu(h)
        out = torch.einsum("bsf,fd->bsd", h, w2)
        return out

    x = A_x
    x = x + _A_ref(_layernorm(x, axis=-1), A_k_cache, A_v_cache, A_wq, A_wo)
    x = x + _B_ref(_layernorm(x, axis=-1), B_w1, B_w2)
    x = x + _A_ref(_layernorm(x, axis=-1), A_k_cache, A_v_cache, A_wq, A_wo)
    x = x + _B_ref(_layernorm(x, axis=-1), B_w1, B_w2)
    return x
```

```python
import sys
KN = "interleave_layers__mha_block_cached__dense_activation_silu__decode_kernel"
P = dict(NR=8, NL=36, WIN=40, polK="nt", polV="nt", polK2="nt", polV2="nt", sleep=1, interleave=1)
for a in sys.argv[2:]:
    k, v = a.split("=")
    P[k] = int(v) if v.lstrip("-").isdigit() else v
NR, NL, WIN = P["NR"], P["NL"], P["WIN"]

out = []
def e(s): out.append("    " + s)
def lab(s): out.append(s + ":")
def nop(n): e("s_nop %d" % (n - 1))

sK, sV, sWQ, sWO, sW1, sW2, sWS, sDBG, sX, sOUT = 4, 8, 12, 16, 20, 24, 28, 32, 36, 40
sW, sOFF, sH, sB = 44, 45, 46, 47
sM1, sM2, sM3 = 48, 50, 52
sT0, sT1, sT2, sCNT, sLB = 54, 55, 56, 57, 58
def srd(r): return "s[%d:%d]" % (r, r + 3)
vL, vK, vV, vWQ, vW1, vWO, vPST, vPLD, vLT, vP2, vP2X, vRW, vXW, vQ, vLN, vT = range(16)
vM = 16; vX = 20
RING = 24
POOL = RING + 4 * NR
QB = POOL; SC = POOL + 16; D0 = POOL + 32; D1 = POOL + 36; A0 = POOL + 40; A1 = POOL + 44; ST = POOL + 48
RET = POOL + 64
NV = (256 - RET) // 4
NA = 64
NS = 256 - NL - NA - NV
def v(r, n=1): return "v%d" % r if n == 1 else "v[%d:%d]" % (r, r + n - 1)
def a(r, n=4): return "a[%d:%d]" % (r, r + n - 1)
LW = NL * 1024
MISC = 4 * LW
X1, RQ, RO, RH, ML, FLG = MISC, MISC + 2048, MISC + 4096, MISC + 6144, MISC + 8192, MISC + 8256
LDS_BYTES = MISC + 8320
assert LDS_BYTES <= 163840
CEXP = 1.4426950408889634 / (128 ** 0.5)
import struct
def f2u(x): return struct.unpack("<I", struct.pack("<f", x))[0]

vm = []; vmid = [0]
def vmem(s):
    e(s); vmid[0] += 1; vm.append(vmid[0]); return vmid[0]
def vwait(i):
    if i in vm:
        k = vm.index(i); n = len(vm) - 1 - k
        e("s_waitcnt vmcnt(%d)" % min(n, 63))
        del vm[:k + 1]
def vwait_all():
    e("s_waitcnt vmcnt(0)"); vm.clear()
cur_off = [None]
def soff(x):
    if x == 0: return "0"
    if cur_off[0] != x:
        e("s_mov_b32 s%d, 0x%x" % (sOFF, x)); cur_off[0] = x
    return "s%d" % sOFF
def load(dst, vo, s, off, pol=""):
    so = soff(off & ~4095)
    return vmem("buffer_load_dwordx4 %s, %s, %s, %s offen offset:%d %s" % (dst, v(vo), srd(s), so, off & 4095, pol if pol != "def" else ""))
def load_lds(tile, pol):
    off = tile * 1024
    so = soff(off & ~4095)
    if tile % 4 == 0 or True:
        e("s_add_u32 m0, s%d, 0x%x" % (sLB, off & ~4095)); nop(1)
    return vmem("buffer_load_dwordx4 %s, %s, %s offen offset:%d %s lds" % (v(vK), srd(sK), so, off & 4095, pol if pol != "def" else ""))

ringq = []
free_slots = list(range(NR))
landed = {}
hold = [False]
def pump():
    while ringq and free_slots and not hold[0]:
        tag, vo, s, off, pol = ringq.pop(0)
        sl = free_slots.pop(0)
        landed[tag] = (sl, load(v(RING + 4 * sl, 4), vo, s, off, pol))
def ring_get(tag):
    if tag not in landed:
        assert not hold[0]; pump()
    sl, i = landed[tag]; vwait(i); return v(RING + 4 * sl, 4)
def ring_done(tag):
    sl, _ = landed.pop(tag); free_slots.append(sl); pump()

def ksrc(u):
    if u < NL: return ("L", u)
    if u < NL + NA: return ("R", a(4 * (u - NL)))
    if u < NL + NA + NV: return ("R", v(RET + 4 * (u - NL - NA), 4))
    return ("S", None)
def q_streamK(layer):
    for u in range(NL + NA + NV, 256):
        ringq.append((("K", layer, u), vK, sK, u * 1024, P["polK"] if layer == 0 else P["polK2"]))
def q_V(layer):
    for u in range(256):
        ringq.append((("V", layer, u), vV, sV, u * 1024, P["polV"] if layer == 0 else P["polV2"]))
def q_W(name, layer):
    vo, s, stride = {"wo": (vWO, sWO, 4096), "w2": (vWO, sW2, 4096), "wq": (vWQ, sWQ, 4 * 8192), "w1": (vW1, sW1, 4 * 3584)}[name]
    for t in range(32):
        ringq.append(((name, layer, t), vo, s, t * stride, ""))

DPP = "row_mask:0xf bank_mask:0xf"
def allreduce(op, x, t):
    for r in (8, 4, 2, 1):
        nop(2); e("%s_dpp %s, %s, %s row_ror:%d %s" % (op, v(x), v(x), v(x), r, DPP))
    for sw in ("v_permlane16_swap_b32", "v_permlane32_swap_b32"):
        e("v_mov_b32 %s, %s" % (v(t), v(x))); nop(2)
        e("%s %s, %s" % (sw, v(x), v(t))); nop(1)
        e("%s %s, %s, %s" % (op, v(x), v(x), v(t)))
def barrier():
    e("s_waitcnt lgkmcnt(0)"); e("s_barrier")
def exec_lo(): e("s_mov_b32 exec_hi, 0")
def exec_all(): e("s_mov_b32 exec_hi, -1")
def buildA(dst, p, j):
    for k in range(4):
        e("v_and_b32_dpp %s, %s, %s row_newbcast:%d %s" % (v(dst + k), v(p), v(vM + k), j, DPP))
def gemv(tiles, acc, hold_tail=False):
    n = len(tiles)
    buildA(A0, tiles[0][2], tiles[0][3])
    for i, (get, done, p, j) in enumerate(tiles):
        if hold_tail and i == n - NR: hold[0] = True
        cur = A0 if i % 2 == 0 else A1
        nxt = A1 if i % 2 == 0 else A0
        if i + 1 < n: buildA(nxt, tiles[i + 1][2], tiles[i + 1][3])
        else: nop(2)
        b = get()
        e("v_mfma_f32_16x16x32_bf16 %s, %s, %s, %s" % (v(acc, 4), v(cur, 4), b, "0" if i == 0 else v(acc, 4)))
        done()
    nop(8)
def ring_tiles(name, layer, n, pfn):
    r = []
    for t in range(n):
        tag = (name, layer, t); p, j = pfn(t)
        r.append((lambda tag=tag: ring_get(tag), lambda tag=tag: ring_done(tag), p, j))
    return r
def round_bf16_pair(x, y, t):
    e("v_cvt_pk_bf16_f32 %s, %s, %s" % (v(t), v(x), v(y)))
    e("v_lshlrev_b32 %s, 16, %s" % (v(x), v(t)))
    e("v_and_b32 %s, 0xffff0000, %s" % (v(y), v(t)))

def layernorm():
    t = ST
    e("ds_read_b128 %s, %s offset:%d" % (v(t, 4), v(vLN), X1 - MISC))
    e("ds_read_b128 %s, %s offset:%d" % (v(t + 4, 4), v(vLN), X1 - MISC + 16))
    e("ds_read_b32 %s, %s offset:%d" % (v(t + 12), v(vP2X), X1 - MISC))
    e("ds_read_b32 %s, %s offset:%d" % (v(t + 13), v(vP2X), X1 - MISC + 256))
    e("s_waitcnt lgkmcnt(2)")
    s = t + 8
    e("v_add_f32 %s, %s, %s" % (v(s), v(t), v(t + 1)))
    for k in range(2, 8): e("v_add_f32 %s, %s, %s" % (v(s), v(s), v(t + k)))
    allreduce("v_add_f32", s, t + 9)
    e("v_mul_f32 %s, 0x%x, %s" % (v(s), f2u(1.0 / 512), v(s)))
    for k in range(8): e("v_sub_f32 %s, %s, %s" % (v(t + k), v(t + k), v(s)))
    q = t + 10
    e("v_mul_f32 %s, %s, %s" % (v(q), v(t), v(t)))
    for k in range(1, 8): e("v_fmac_f32 %s, %s, %s" % (v(q), v(t + k), v(t + k)))
    allreduce("v_add_f32", q, t + 9)
    e("v_mov_b32 %s, 0x%x" % (v(t + 9), f2u(1e-5)))
    e("v_fmac_f32 %s, 0x%x, %s" % (v(t + 9), f2u(1.0 / 512), v(q)))
    e("v_rsq_f32 %s, %s" % (v(q), v(t + 9)))
    e("s_waitcnt lgkmcnt(0)")
    for k in range(2):
        e("v_sub_f32 %s, %s, %s" % (v(t + 12 + k), v(t + 12 + k), v(s)))
        e("v_mul_f32 %s, %s, %s" % (v(t + 12 + k), v(t + 12 + k), v(q)))
        e("v_cvt_pk_bf16_f32 %s, %s, %s" % (v(SC + k), v(t + 12 + k), v(t + 12 + k)))
    nop(2)
def write_red(area, acc):
    exec_lo()
    e("ds_write_b128 %s, %s offset:%d" % (v(vRW), v(acc, 4), area - MISC))
    exec_all()
def wp(t): return (SC + (t >> 4), t & 15)

def make_qB():
    t = ST
    for w in range(4):
        d = t if w == 0 else t + 8
        e("ds_read_b128 %s, %s offset:%d" % (v(d, 4), v(vQ), RQ - MISC + w * 512))
        e("ds_read_b128 %s, %s offset:%d" % (v(d + 4, 4), v(vQ), RQ - MISC + w * 512 + 16))
        if w > 0:
            e("s_waitcnt lgkmcnt(0)")
            for k in range(8): e("v_add_f32 %s, %s, %s" % (v(t + k), v(t + k), v(t + 8 + k)))
    for k in range(4):
        e("v_cvt_pk_bf16_f32 %s, %s, %s" % (v(t + 8 + k), v(t + 2 * k), v(t + 2 * k + 1)))
    e("v_lshrrev_b32 %s, 2, %s" % (v(t), v(vL)))
    e("v_and_b32 %s, 3, %s" % (v(t), v(t)))
    for tt in range(4):
        e("v_cmp_eq_u32 vcc, %d, %s" % (tt, v(t))); nop(2)
        for k in range(4): e("v_cndmask_b32 %s, 0, %s, vcc" % (v(QB + 4 * tt + k), v(t + 8 + k)))
    nop(2)

def qk_phase(layer):
    groups = list(range(64))
    def srcs(gi): return [ksrc(4 * gi + t)[0] for t in range(4)]
    if layer == 1 and P["interleave"]:
        st = [g for g in groups if "S" in srcs(g)]; rt = [g for g in groups if "S" not in srcs(g)]
        order = []
        ns, nr_ = len(st), len(rt); ri = 0
        for k, g in enumerate(st):
            order.append(g)
            while ri * ns < (k + 1) * nr_: order.append(rt[ri]); ri += 1
        order += rt[ri:]
    else:
        order = groups
    dq = []
    did = {}
    if layer == 0:
        dq = [u for u in range(NL + NA + NV) if u not in pre_issued]
        did.update(pre_issued)
    def issue_direct(upto):
        while dq and dq[0] <= upto:
            u = dq.pop(0); k, r = ksrc(u)
            did[u] = load_lds(u, P["polK"]) if k == "L" else load(r, vK, sK, u * 1024, P["polK"])
    written = set()
    def reduce(gi, D):
        G, i = gi >> 2, gi & 3
        tmp = A0
        e("v_mov_b32_dpp %s, %s quad_perm:[0,0,0,0] %s" % (v(tmp), v(D), DPP))
        for k in (1, 2, 3):
            e("v_add_f32_dpp %s, %s, %s quad_perm:[%d,%d,%d,%d] %s" % (v(tmp), v(D + k), v(tmp), k, k, k, k, DPP))
        m = {0: 60, 1: sM1, 2: sM2, 3: sM3}[i]
        if G not in written:
            e("v_mov_b32 %s, %s" % (v(SC + G), v(tmp))); written.add(G)
        else:
            e("v_cndmask_b32 %s, %s, %s, s[%d:%d]" % (v(SC + G), v(SC + G), v(tmp), m, m + 1))
    prev = None
    staged = {}
    def stage(gi):
        for t in range(4):
            u = 4 * gi + t
            if ksrc(u)[0] == "L":
                if layer == 0: vwait(did[u])
                e("ds_read_b128 %s, %s offset:%d" % (v(ST + 4 * t, 4), v(vLT), u * 1024))
        staged[gi] = True
    for n, gi in enumerate(order):
        D = D0 if n % 2 == 0 else D1
        if "L" in srcs(gi) and gi not in staged: stage(gi)
        if "L" in srcs(gi): e("s_waitcnt lgkmcnt(0)")
        for t in range(4):
            u = 4 * gi + t; k, r = ksrc(u)
            if layer == 0:
                issue_direct(u + WIN)
                if not dq: pump()
            if k == "L": b = v(ST + 4 * t, 4)
            elif k == "R":
                if layer == 0: vwait(did[u])
                b = r
            else: b = ring_get(("K", layer, u))
            e("v_mfma_f32_16x16x32_bf16 %s, %s, %s, %s" % (v(D, 4), b, v(QB + 4 * t, 4), "0" if t == 0 else v(D, 4)))
            if k == "S": ring_done(("K", layer, u))
        if n + 1 < len(order) and "L" in srcs(order[n + 1]): stage(order[n + 1])
        if prev is not None:
            nop(4); reduce(*prev)
        prev = (gi, D)
    nop(8); reduce(*prev)

def softmax():
    m, t = D0, D0 + 1
    e("v_max3_f32 %s, %s, %s, %s" % (v(m), v(SC), v(SC + 1), v(SC + 2)))
    for k in range(3, 15, 2): e("v_max3_f32 %s, %s, %s, %s" % (v(m), v(m), v(SC + k), v(SC + k + 1)))
    e("v_max_f32 %s, %s, %s" % (v(m), v(m), v(SC + 15)))
    allreduce("v_max_f32", m, t)
    e("s_mov_b32 s%d, 0x%x" % (sT0, f2u(CEXP)))
    e("v_mul_f32 %s, s%d, %s" % (v(t), sT0, v(m)))
    for k in range(16): e("v_fma_f32 %s, %s, s%d, -%s" % (v(SC + k), v(SC + k), sT0, v(t)))
    for k in range(16): e("v_exp_f32 %s, %s" % (v(SC + k), v(SC + k)))
    l = D0 + 2
    nop(1)
    e("v_add_f32 %s, %s, %s" % (v(l), v(SC), v(SC + 1)))
    for k in range(2, 16): e("v_add_f32 %s, %s, %s" % (v(l), v(l), v(SC + k)))
    for k in range(16): e("v_cvt_pk_bf16_f32 %s, %s, %s" % (v(SC + k), v(SC + k), v(SC + k)))
    allreduce("v_add_f32", l, t)
    e("v_mul_f32 %s, s%d, %s" % (v(vT), sT0, v(m)))
    e("v_mov_b32 %s, %s" % (v(ST + 13), v(l)))
    e("v_mov_b32 %s, %s" % (v(ST + 12), v(vT)))
    nop(2)

def combine():
    write_red(RO, D1)
    e("v_mov_b32 %s, s%d" % (v(vT), sW)); e("v_lshlrev_b32 %s, 3, %s" % (v(vT), v(vT)))
    e("v_add_u32 %s, 0x%x, %s" % (v(vT), ML, v(vT)))
    e("ds_write_b64 %s, %s" % (v(vT), v(ST + 12, 2)))
    barrier()
    t = ST
    e("v_mov_b32 %s, 0x%x" % (v(vT), ML))
    e("ds_read_b128 %s, %s" % (v(t, 4), v(vT)))
    e("ds_read_b128 %s, %s offset:16" % (v(t + 4, 4), v(vT)))
    for w in range(4):
        for G in range(2):
            e("ds_read_b32 %s, %s offset:%d" % (v(QB + 2 * w + G), v(vP2), RO - MISC + w * 512 + G * 256))
    e("s_waitcnt lgkmcnt(8)")
    M = t + 8
    e("v_max3_f32 %s, %s, %s, %s" % (v(M), v(t), v(t + 2), v(t + 4)))
    e("v_max_f32 %s, %s, %s" % (v(M), v(M), v(t + 6)))
    for w in range(4): e("v_sub_f32 %s, %s, %s" % (v(t + 2 * w), v(t + 2 * w), v(M)))
    for w in range(4): e("v_exp_f32 %s, %s" % (v(t + 2 * w), v(t + 2 * w)))
    nop(1)
    e("v_mul_f32 %s, %s, %s" % (v(M), v(t), v(t + 1)))
    for w in range(1, 4): e("v_fmac_f32 %s, %s, %s" % (v(M), v(t + 2 * w), v(t + 2 * w + 1)))
    e("v_rcp_f32 %s, %s" % (v(M), v(M)))
    e("s_waitcnt lgkmcnt(0)")
    for G in range(2):
        e("v_mul_f32 %s, %s, %s" % (v(t + 10 + G), v(QB + G), v(t)))
        for w in range(1, 4): e("v_fmac_f32 %s, %s, %s" % (v(t + 10 + G), v(QB + 2 * w + G), v(t + 2 * w)))
        e("v_mul_f32 %s, %s, %s" % (v(t + 10 + G), v(t + 10 + G), v(M)))
        e("v_cvt_pk_bf16_f32 %s, %s, %s" % (v(SC + G), v(t + 10 + G), v(t + 10 + G)))
    nop(2)

def hidden():
    t = ST
    for w in range(4):
        for G in range(2):
            e("ds_read_b32 %s, %s offset:%d" % (v(t + 2 * w + G), v(vP2), RH - MISC + w * 512 + G * 256))
    e("s_waitcnt lgkmcnt(0)")
    for G in range(2):
        for w in range(1, 4): e("v_add_f32 %s, %s, %s" % (v(t + G), v(t + G), v(t + 2 * w + G)))
    round_bf16_pair(t, t + 1, t + 2)
    for G in range(2):
        e("v_mul_f32 %s, 0x%x, %s" % (v(t + 4 + G), f2u(-1.4426950408889634), v(t + G)))
    for G in range(2): e("v_exp_f32 %s, %s" % (v(t + 4 + G), v(t + 4 + G)))
    nop(1)
    for G in range(2): e("v_add_f32 %s, 1.0, %s" % (v(t + 4 + G), v(t + 4 + G)))
    for G in range(2): e("v_rcp_f32 %s, %s" % (v(t + 4 + G), v(t + 4 + G)))
    nop(1)
    for G in range(2):
        e("v_mul_f32 %s, %s, %s" % (v(t + G), v(t + G), v(t + 4 + G)))
        e("v_cvt_pk_bf16_f32 %s, %s, %s" % (v(SC + G), v(t + G), v(t + G)))
    nop(2)

lbl = [0]
def publish(ph, acc, last):
    so = soff(0x1000 * 16 * ph) if ph else "0"
    e("v_add_u32 %s, s%d, %s" % (v(vT), sT2, v(vPST)))
    i = vmem("buffer_store_dwordx4 %s, %s, %s, %s offen sc1" % (v(acc, 4), v(vT), srd(sWS), so))
    hold[0] = False; pump()
    vwait(i)
    e("s_barrier")
    lbl[0] += 1; n = lbl[0]
    e("s_cmp_lg_u32 s%d, 0" % sW); e("s_cbranch_scc1 L_skip%d" % n)
    e("s_mov_b64 exec, 1")
    e("v_mov_b32 %s, s%d" % (v(ST), sB)); e("v_lshlrev_b32 %s, 2, %s" % (v(ST), v(ST)))
    e("v_add_u32 %s, %d, %s" % (v(ST), ph * 32, v(ST)))
    e("v_mov_b32 %s, 1" % v(ST + 1))
    if not last:
        e("buffer_atomic_add %s, %s, %s, 0 offen" % (v(ST + 1), v(ST), srd(sDBG)))
        e("s_mov_b32 s%d, 0" % sCNT)
        lab("L_poll%d" % n)
        e("buffer_load_dword %s, %s, %s, 0 offen sc1" % (v(ST + 2), v(ST), srd(sDBG)))
        e("s_waitcnt vmcnt(0)")
        e("v_readfirstlane_b32 s%d, %s" % (sT0, v(ST + 2)))
        e("s_add_u32 s%d, s%d, 1" % (sCNT, sCNT))
        e("s_cmp_ge_u32 s%d, 32" % sT0); e("s_cbranch_scc1 L_done%d" % n)
        e("s_cmp_ge_u32 s%d, 0x100000" % sCNT); e("s_cbranch_scc1 L_done%d" % n)
        e("s_sleep %d" % P["sleep"]); e("s_branch L_poll%d" % n)
        lab("L_done%d" % n)
    else:
        e("buffer_atomic_add %s, %s, %s, 0 offen sc0" % (v(ST + 1), v(ST), srd(sDBG)))
        e("s_waitcnt vmcnt(0)")
        e("v_mov_b32 %s, 0x%x" % (v(ST), FLG))
        e("ds_write_b32 %s, %s" % (v(ST), v(ST + 1)))
    e("s_mov_b64 exec, -1")
    lab("L_skip%d" % n)
    barrier()
    if last:
        e("v_mov_b32 %s, 0x%x" % (v(ST), FLG))
        e("ds_read_b32 %s, %s" % (v(ST + 1), v(ST))); e("s_waitcnt lgkmcnt(0)")
        e("v_readfirstlane_b32 s%d, %s" % (sT0, v(ST + 1)))
        e("s_cmp_lg_u32 s%d, 31" % sT0); e("s_cbranch_scc1 L_end")

def gather(ph, npart):
    ids = []
    for i in range(npart // 2):
        off = ph * 65536 + i * 4096
        so = soff(off)
        ids.append(vmem("buffer_load_dwordx4 %s, %s, %s, %s offen sc1" % (v(POOL + 4 * i, 4), v(vPLD), srd(sWS), so)))
    for i in range(1, npart // 2):
        if i == 1: vwait(ids[0])
        vwait(ids[i])
        for k in range(4): e("v_add_f32 %s, %s, %s" % (v(POOL + k), v(POOL + k), v(POOL + 4 * i + k)))
    t = POOL + 4
    for k in range(4): e("v_mov_b32 %s, %s" % (v(t + k), v(POOL + k)))
    nop(2)
    for k in range(4): e("v_permlane32_swap_b32 %s, %s" % (v(POOL + k), v(t + k)))
    nop(1)
    for k in range(4): e("v_add_f32 %s, %s, %s" % (v(POOL + k), v(POOL + k), v(t + k)))
    round_bf16_pair(POOL, POOL + 1, t); round_bf16_pair(POOL + 2, POOL + 3, t)
    for k in range(4): e("v_add_f32 %s, %s, %s" % (v(vX + k), v(vX + k), v(POOL + k)))
    round_bf16_pair(vX, vX + 1, t); round_bf16_pair(vX + 2, vX + 3, t)
def x_to_lds():
    e("ds_write_b128 %s, %s offset:%d" % (v(vXW), v(vX, 4), X1 - MISC))
    barrier()

e("s_cmp_ge_u32 s2, 256"); e("s_cbranch_scc1 L_end")
e("s_load_dwordx16 s[64:79], s[0:1], 0")
e("s_load_dwordx4 s[80:83], s[0:1], 64")
e("s_load_dwordx2 s[84:85], s[0:1], 80")
e("v_lshrrev_b32 %s, 6, v0" % v(vT)); nop(1)
e("v_readfirstlane_b32 s%d, %s" % (sW, v(vT)))
e("v_and_b32 %s, 63, v0" % v(vL))
e("s_and_b32 s%d, s2, 31" % sH); e("s_lshr_b32 s%d, s2, 5" % sB)
e("s_waitcnt lgkmcnt(0)")
def mk(srdr, pair, off_s, shift, size, mul=None):
    if mul is None:
        e("s_lshl_b32 s%d, s%d, %d" % (sT0, off_s, shift))
        e("s_lshr_b32 s%d, s%d, %d" % (sT1, off_s, 32 - shift))
        e("s_add_u32 s%d, s%d, s%d" % (srdr, pair, sT0)); e("s_addc_u32 s%d, s%d, s%d" % (srdr + 1, pair + 1, sT1))
    e("s_mov_b32 s%d, 0x%x" % (srdr + 2, size)); e("s_mov_b32 s%d, 0x20000" % (srdr + 3))
mk(sK, 66, 2, 20, 1 << 20); mk(sV, 68, 2, 20, 1 << 20)
mk(sX, 64, sB, 10, 1024); mk(sOUT, 80, sB, 10, 1024)
mk(sWS, 84, sB, 18, 1 << 18)
mk(sWQ, 70, sH, 8, 0); e("s_sub_u32 s%d, 0x400000, s%d" % (sWQ + 2, sT0))
mk(sWO, 72, sH, 17, 1 << 17)
e("s_min_u32 s%d, s%d, 13" % (sT2, sH))
mk(sW1, 76, sT2, 8, 0); e("s_sub_u32 s%d, 0x%x, s%d" % (sW1 + 2, 512 * 3584, sT0))
mk(sW2, 78, sT2, 17, 1 << 17)
e("s_cmp_lt_u32 s%d, 14" % sH)
e("s_cselect_b32 s%d, s%d, 0" % (sW1 + 2, sW1 + 2)); e("s_cselect_b32 s%d, s%d, 0" % (sW2 + 2, sW2 + 2))
e("s_mov_b32 s%d, s82" % sDBG); e("s_mov_b32 s%d, s83" % (sDBG + 1)); e("s_mov_b32 s%d, 256" % (sDBG + 2)); e("s_mov_b32 s%d, 0x20000" % (sDBG + 3))
e("s_lshl_b32 s%d, s%d, 11" % (sT2, sH))
e("s_mul_i32 s%d, s%d, %d" % (sLB, sW, LW))
for m, val in ((60, 0x11111111), (sM1, 0x22222222), (sM2, 0x44444444), (sM3, 0x88888888)):
    e("s_mov_b32 s%d, 0x%x" % (m, val)); e("s_mov_b32 s%d, 0x%x" % (m + 1, val))
c, g, w_, t3, t4 = ST, ST + 1, ST + 2, ST + 3, ST + 4
e("v_and_b32 %s, 15, %s" % (v(c), v(vL))); e("v_lshrrev_b32 %s, 4, %s" % (v(g), v(vL)))
e("v_mov_b32 %s, s%d" % (v(w_), sW))
e("v_and_b32 %s, 31, %s" % (v(t3), v(vL)))
e("v_lshlrev_b32 %s, 3, %s" % (v(t4), v(t3))); e("v_lshl_add_u32 %s, %s, 8, %s" % (v(ST + 5), v(w_), v(t4)))
xid = vmem("buffer_load_dwordx2 %s, %s, %s, 0 offen" % (v(vX, 2), v(ST + 5), srd(sX)))
e("v_lshl_add_u32 %s, %s, 7, %s" % (v(t4), v(w_), v(g)))
e("v_lshlrev_b32 %s, 4, %s" % (v(ST + 6), v(c)))
e("v_lshl_add_u32 %s, %s, 13, %s" % (v(vWQ), v(t4), v(ST + 6)))
wq0 = [load(v(RET + 4 * t, 4), vWQ, sWQ, t * 4 * 8192) for t in range(min(32, NV))]
assert NV >= 32
e("v_lshrrev_b32 %s, 2, %s" % (v(vK), v(c))); e("v_lshlrev_b32 %s, 8, %s" % (v(vK), v(vK)))
e("v_and_b32 %s, 3, %s" % (v(vT), v(c))); e("v_lshl_add_u32 %s, %s, 2, %s" % (v(vT), v(g), v(vT)))
e("v_lshl_add_u32 %s, %s, 4, %s" % (v(vK), v(vT), v(vK))); e("v_lshl_add_u32 %s, %s, 18, %s" % (v(vK), v(w_), v(vK)))
pre_issued = {}
for u in range(min(NL, 30)): pre_issued[u] = load_lds(u, P["polK"])
e("v_lshlrev_b32 %s, 4, %s" % (v(vV), v(vL))); e("v_mov_b32 %s, %s" % (v(vLT), v(vV)))
e("v_lshl_add_u32 %s, %s, 18, %s" % (v(vV), v(w_), v(vV)))
e("v_add_u32 %s, s%d, %s" % (v(vLT), sLB, v(vLT)))
e("s_mov_b32 s%d, 3584" % sT0); e("v_mul_lo_u32 %s, %s, s%d" % (v(vW1), v(t4), sT0)); e("v_add_u32 %s, %s, %s" % (v(vW1), v(vW1), v(ST + 6)))
e("v_lshl_add_u32 %s, %s, 10, %s" % (v(vWO), v(g), v(ST + 6))); e("v_lshl_add_u32 %s, %s, 8, %s" % (v(vWO), v(w_), v(vWO)))
e("v_lshlrev_b32 %s, 5, %s" % (v(vPST), v(c))); e("v_lshl_add_u32 %s, %s, 4, %s" % (v(vPST), v(g), v(vPST)))
e("v_lshl_add_u32 %s, %s, 9, %s" % (v(vPST), v(w_), v(vPST)))
e("v_add_u32 %s, 0x%x, %s" % (v(vRW), MISC, v(vPST)))
e("v_mov_b32 %s, 0x80000000" % v(vT)); e("v_cmp_gt_u32 vcc, 32, %s" % v(vL)); nop(2)
e("v_cndmask_b32 %s, %s, %s, vcc" % (v(vPST), v(vT), v(vPST)))
e("v_lshlrev_b32 %s, 4, %s" % (v(vXW), v(t3))); e("v_lshl_add_u32 %s, %s, 9, %s" % (v(vXW), v(w_), v(vXW)))
e("v_lshrrev_b32 %s, 5, %s" % (v(vT), v(vL))); e("v_lshl_add_u32 %s, %s, 11, %s" % (v(vPLD), v(vT), v(vXW)))
e("v_add_u32 %s, 0x%x, %s" % (v(vXW), MISC, v(vXW)))
e("v_lshlrev_b32 %s, 4, %s" % (v(vP2), v(c))); e("v_lshl_add_u32 %s, %s, 2, %s" % (v(vP2), v(g), v(vP2)))
e("v_add_u32 %s, 0x%x, %s" % (v(vP2), MISC, v(vP2))); e("v_lshl_add_u32 %s, %s, 9, %s" % (v(vP2X), v(w_), v(vP2)))
e("v_and_b32 %s, 3, %s" % (v(vT), v(c))); e("v_lshl_add_u32 %s, %s, 2, %s" % (v(vT), v(g), v(vT)))
e("v_lshlrev_b32 %s, 5, %s" % (v(vQ), v(vT))); e("v_add_u32 %s, 0x%x, %s" % (v(vQ), MISC, v(vQ)))
e("v_lshlrev_b32 %s, 5, %s" % (v(vLN), v(vL))); e("v_add_u32 %s, 0x%x, %s" % (v(vLN), MISC, v(vLN)))
for k in range(4):
    e("v_mov_b32 %s, 0" % v(vM + k))
    e("v_mov_b32 %s, 0xffff" % v(vT)); e("v_cmp_eq_u32 vcc, %d, %s" % (2 * k, v(c))); nop(2)
    e("v_cndmask_b32 %s, %s, %s, vcc" % (v(vM + k), v(vM + k), v(vT)))
    e("v_mov_b32 %s, 0xffff0000" % v(vT)); e("v_cmp_eq_u32 vcc, %d, %s" % (2 * k + 1, v(c))); nop(2)
    e("v_cndmask_b32 %s, %s, %s, vcc" % (v(vM + k), v(vM + k), v(vT)))
vwait(xid)
e("v_and_b32 %s, 0xffff0000, %s" % (v(vX + 3), v(vX + 1))); e("v_lshlrev_b32 %s, 16, %s" % (v(vX + 2), v(vX + 1)))
e("v_and_b32 %s, 0xffff0000, %s" % (v(vX + 1), v(vX))); e("v_lshlrev_b32 %s, 16, %s" % (v(vX), v(vX)))

def q_phase(layer):
    x_to_lds(); layernorm()
    if layer == 0:
        tiles = [(lambda t=t: (vwait(wq0[t]), v(RET + 4 * t, 4))[1], lambda: None) + wp(t) for t in range(32)]
    else:
        tiles = ring_tiles("wq", layer, 32, wp)
    gemv(tiles, D0)
    write_red(RQ, D0); barrier(); make_qB()
def pvp(u): return (SC + (u >> 4), 4 * (u & 3) + ((u >> 2) & 3))

q_streamK(0); q_V(0); q_W("wo", 0); q_W("w1", 0); q_W("w2", 0)
q_W("wq", 1); q_streamK(1); q_V(1); q_W("wo", 1); q_W("w1", 1); q_W("w2", 1)
hold[0] = True
q_phase(0)
hold[0] = False
for layer in range(2):
    e("; ---------------- layer %d attention ----------------" % layer)
    qk_phase(layer)
    softmax()
    gemv(ring_tiles("V", layer, 256, pvp), D1)
    combine()
    gemv(ring_tiles("wo", layer, 32, wp), D0, hold_tail=True)
    publish(2 * layer, D0, False)
    gather(2 * layer, 32)
    e("; ---------------- layer %d ffn ----------------" % layer)
    x_to_lds(); layernorm()
    gemv(ring_tiles("w1", layer, 32, wp), D0)
    write_red(RH, D0); barrier(); hidden()
    gemv(ring_tiles("w2", layer, 32, wp), D0, hold_tail=True)
    publish(2 * layer + 1, D0, layer == 1)
    gather(2 * layer + 1, 14)
    if layer == 0: q_phase(1)
assert not ringq and not landed
e("v_cvt_pk_bf16_f32 %s, %s, %s" % (v(ST), v(vX), v(vX + 1)))
e("v_cvt_pk_bf16_f32 %s, %s, %s" % (v(ST + 1), v(vX + 2), v(vX + 3)))
e("v_subrev_u32 %s, 0x%x, %s" % (v(ST + 2), MISC, v(vXW)))
e("v_lshrrev_b32 %s, 1, %s" % (v(ST + 2), v(ST + 2)))
exec_lo()
vmem("buffer_store_dwordx2 %s, %s, %s, 0 offen" % (v(ST, 2), v(ST + 2), srd(sOUT)))
vwait_all()
lab("L_end")
e("s_endpgm")

hdr = """; Persistent 2-layer decode step: one workgroup per (batch, head); K tiles kept on chip between the layers.
; @launch grid=(256,1,1) block=(256,1,1) lds=%d
.amdgcn_target "amdgcn-amd-amdhsa--gfx950"
.text
.globl %s
.p2align 8
.type %s,@function
%s:
""" % (LDS_BYTES, KN, KN, KN)
ftr = """
.section .rodata,"a"
.p2align 6
.amdhsa_kernel %s
  .amdhsa_next_free_vgpr 512
  .amdhsa_next_free_sgpr 96
  .amdhsa_accum_offset 256
  .amdhsa_group_segment_fixed_size 0
  .amdhsa_kernarg_size 88
  .amdhsa_user_sgpr_count 2
  .amdhsa_user_sgpr_kernarg_segment_ptr 1
  .amdhsa_system_sgpr_workgroup_id_x 1
.end_amdhsa_kernel
""" % KN
open(sys.argv[1], "w").write(hdr + "\n".join(l.strip() if not l.endswith(":") else l for l in out) + ftr)
print("lines", len(out), "NV", NV, "NS", NS, "RET", RET, "LDS", LDS_BYTES)
```

```python
import sys
KN = "interleave_layers__mha_block_cached__dense_activation_silu__decode_kernel"
P = dict(NR=8, NL=36, WIN=8, polK="nt", polV="nt", polK2="nt", polV2="nt", sleep=1, interleave=1, stamps=0, touch1=12, touch2=200, touch3=200, qissue=1, WS=8, polW="def", polT="def", pre=8, touch0=999)
for a in sys.argv[2:]:
    k, v = a.split("=")
    P[k] = int(v) if v.lstrip("-").isdigit() else v
NR, NL, WIN = P["NR"], P["NL"], P["WIN"]

out = []
def e(s): out.append("    " + s)
def lab(s): out.append(s + ":")
def nop(n): e("s_nop %d" % (n - 1))

sK, sV, sWQ, sWO, sW1, sW2, sWS, sDBG, sX, sOUT = 4, 8, 12, 16, 20, 24, 28, 32, 36, 40
sW, sOFF, sH, sB = 44, 45, 46, 47
sM1, sM2, sM3 = 48, 50, 52
sT0, sT1, sT2, sCNT, sLB = 54, 55, 56, 57, 58
def srd(r): return "s[%d:%d]" % (r, r + 3)
vL, vK, vV, vWQ, vW1, vWO, vPST, vPLD, vLT, vP2, vP2X, vRW, vXW, vQ, vLN, vT = range(16)
vM = 16; vX = 20
RING = 24
POOL = RING + 4 * NR
QB = POOL; SC = POOL + 16; D0 = POOL + 32; D1 = POOL + 36; A0 = POOL + 40; A1 = POOL + 44; ST = POOL + 48
RET = POOL + 64
NV = (256 - RET) // 4
NA = 64
NS = 256 - NL - NA - NV
def v(r, n=1): return "v%d" % r if n == 1 else "v[%d:%d]" % (r, r + n - 1)
def a(r, n=4): return "a[%d:%d]" % (r, r + n - 1)
LW = NL * 1024
MISC = 4 * LW
X1, RQ, RO, RH, ML, FLG = MISC, MISC + 2048, MISC + 4096, MISC + 6144, MISC + 8192, MISC + 8256
LDS_BYTES = MISC + 8320
assert LDS_BYTES <= 163840
CEXP = 1.4426950408889634 / (128 ** 0.5)
import struct
def f2u(x): return struct.unpack("<I", struct.pack("<f", x))[0]

vm = []; vmid = [0]
def vmem(s):
    e(s); vmid[0] += 1; vm.append(vmid[0]); return vmid[0]
def vwait(i):
    if i in vm:
        k = vm.index(i); n = len(vm) - 1 - k
        e("s_waitcnt vmcnt(%d)" % min(n, 63))
        del vm[:k + 1]
def vwait_all():
    e("s_waitcnt vmcnt(0)"); vm.clear()
cur_off = [None]
def soff(x):
    if x == 0: return "0"
    if cur_off[0] != x:
        e("s_mov_b32 s%d, 0x%x" % (sOFF, x)); cur_off[0] = x
    return "s%d" % sOFF
def load(dst, vo, s, off, pol=""):
    so = soff(off & ~4095)
    return vmem("buffer_load_dwordx4 %s, %s, %s, %s offen offset:%d %s" % (dst, v(vo), srd(s), so, off & 4095, pol if pol != "def" else ""))
def load_lds(tile, pol):
    off = tile * 1024
    so = soff(off & ~4095)
    if tile % 4 == 0 or True:
        e("s_add_u32 m0, s%d, 0x%x" % (sLB, off & ~4095)); nop(1)
    return vmem("buffer_load_dwordx4 %s, %s, %s offen offset:%d %s lds" % (v(vK), srd(sK), so, off & 4095, pol if pol != "def" else ""))

nst = [0]
def stamp(lvl=1):
    if P["stamps"] != lvl and not (lvl == 0 and P["stamps"]): return
    if nst[0] >= 16: return
    e("s_memrealtime s[62:63]"); e("s_waitcnt lgkmcnt(0)"); e("s_mov_b32 s%d, s62" % (86 + nst[0])); nst[0] += 1
ringq = []
free_slots = list(range(NR))
landed = {}
hold = [False]
deep = [False]
def pump():
    while ringq and free_slots and not hold[0]:
        if ringq[0][0][0] in ("K", "V") and not deep[0] and len(landed) >= P["WS"]: break
        tag, vo, s, off, pol = ringq.pop(0)
        sl = free_slots.pop(0)
        landed[tag] = (sl, load(v(RING + 4 * sl, 4), vo, s, off, pol))
def ring_get(tag):
    if tag not in landed:
        assert not hold[0]; pump()
    sl, i = landed[tag]; vwait(i); return v(RING + 4 * sl, 4)
def ring_done(tag):
    sl, _ = landed.pop(tag); free_slots.append(sl); pump()

def ksrc(u):
    if u < NL: return ("L", u)
    if u < NL + NA: return ("R", a(4 * (u - NL)))
    if u < NL + NA + NV: return ("R", v(RET + 4 * (u - NL - NA), 4))
    return ("S", None)
def q_streamK(layer):
    for u in range(NL + NA + NV, 256):
        ringq.append((("K", layer, u), vK, sK, u * 1024, P["polK"] if layer == 0 else P["polK2"]))
def q_V(layer):
    for u in range(256):
        ringq.append((("V", layer, u), vV, sV, u * 1024, P["polV"] if layer == 0 else P["polV2"]))
def q_W(name, layer):
    vo, s, stride = {"wo": (vWO, sWO, 4096), "w2": (vWO, sW2, 4096), "wq": (vWQ, sWQ, 4 * 8192), "w1": (vW1, sW1, 4 * 3584)}[name]
    for t in range(32):
        ringq.append(((name, layer, t), vo, s, t * stride, P["polW"]))

DPP = "row_mask:0xf bank_mask:0xf"
def allreduce(op, x, t):
    for r in (8, 4, 2, 1):
        nop(2); e("%s_dpp %s, %s, %s row_ror:%d %s" % (op, v(x), v(x), v(x), r, DPP))
    for sw in ("v_permlane16_swap_b32", "v_permlane32_swap_b32"):
        e("v_mov_b32 %s, %s" % (v(t), v(x))); nop(2)
        e("%s %s, %s" % (sw, v(x), v(t))); nop(1)
        e("%s %s, %s, %s" % (op, v(x), v(x), v(t)))
def barrier():
    e("s_waitcnt lgkmcnt(0)"); e("s_barrier")
def exec_lo(): e("s_mov_b32 exec_hi, 0")
def exec_all(): e("s_mov_b32 exec_hi, -1")
def buildA(dst, p, j):
    for k in range(4):
        e("v_and_b32_dpp %s, %s, %s row_newbcast:%d %s" % (v(dst + k), v(p), v(vM + k), j, DPP))
def gemv(tiles, acc, hold_tail=False, hook=None):
    n = len(tiles)
    buildA(A0, tiles[0][2], tiles[0][3])
    for i, (get, done, p, j) in enumerate(tiles):
        if hold_tail and i == n - NR: hold[0] = True
        cur = A0 if i % 2 == 0 else A1
        nxt = A1 if i % 2 == 0 else A0
        if i + 1 < n: buildA(nxt, tiles[i + 1][2], tiles[i + 1][3])
        else: nop(2)
        b = get()
        e("v_mfma_f32_16x16x32_bf16 %s, %s, %s, %s" % (v(acc, 4), v(cur, 4), b, "0" if i == 0 else v(acc, 4)))
        done()
        if hook: hook(i)
    nop(8)
def ring_tiles(name, layer, n, pfn):
    r = []
    for t in range(n):
        tag = (name, layer, t); p, j = pfn(t)
        r.append((lambda tag=tag: ring_get(tag), lambda tag=tag: ring_done(tag), p, j))
    return r
def round_bf16_pair(x, y, t):
    e("v_cvt_pk_bf16_f32 %s, %s, %s" % (v(t), v(x), v(y)))
    e("v_lshlrev_b32 %s, 16, %s" % (v(x), v(t)))
    e("v_and_b32 %s, 0xffff0000, %s" % (v(y), v(t)))

def layernorm():
    t = ST
    e("ds_read_b128 %s, %s offset:%d" % (v(t, 4), v(vLN), X1 - MISC))
    e("ds_read_b128 %s, %s offset:%d" % (v(t + 4, 4), v(vLN), X1 - MISC + 16))
    e("ds_read_b32 %s, %s offset:%d" % (v(t + 12), v(vP2X), X1 - MISC))
    e("ds_read_b32 %s, %s offset:%d" % (v(t + 13), v(vP2X), X1 - MISC + 256))
    e("s_waitcnt lgkmcnt(2)")
    s = t + 8
    e("v_add_f32 %s, %s, %s" % (v(s), v(t), v(t + 1)))
    for k in range(2, 8): e("v_add_f32 %s, %s, %s" % (v(s), v(s), v(t + k)))
    allreduce("v_add_f32", s, t + 9)
    e("v_mul_f32 %s, 0x%x, %s" % (v(s), f2u(1.0 / 512), v(s)))
    for k in range(8): e("v_sub_f32 %s, %s, %s" % (v(t + k), v(t + k), v(s)))
    q = t + 10
    e("v_mul_f32 %s, %s, %s" % (v(q), v(t), v(t)))
    for k in range(1, 8): e("v_fmac_f32 %s, %s, %s" % (v(q), v(t + k), v(t + k)))
    allreduce("v_add_f32", q, t + 9)
    e("v_mov_b32 %s, 0x%x" % (v(t + 9), f2u(1e-5)))
    e("v_fmac_f32 %s, 0x%x, %s" % (v(t + 9), f2u(1.0 / 512), v(q)))
    e("v_rsq_f32 %s, %s" % (v(q), v(t + 9)))
    e("s_waitcnt lgkmcnt(0)")
    for k in range(2):
        e("v_sub_f32 %s, %s, %s" % (v(t + 12 + k), v(t + 12 + k), v(s)))
        e("v_mul_f32 %s, %s, %s" % (v(t + 12 + k), v(t + 12 + k), v(q)))
        e("v_cvt_pk_bf16_f32 %s, %s, %s" % (v(SC + k), v(t + 12 + k), v(t + 12 + k)))
    nop(2)
def write_red(area, acc):
    exec_lo()
    e("ds_write_b128 %s, %s offset:%d" % (v(vRW), v(acc, 4), area - MISC))
    exec_all()
def wp(t): return (SC + (t >> 4), t & 15)

def make_qB():
    t = ST
    for w in range(4):
        d = t if w == 0 else t + 8
        e("ds_read_b128 %s, %s offset:%d" % (v(d, 4), v(vQ), RQ - MISC + w * 512))
        e("ds_read_b128 %s, %s offset:%d" % (v(d + 4, 4), v(vQ), RQ - MISC + w * 512 + 16))
        if w > 0:
            e("s_waitcnt lgkmcnt(0)")
            for k in range(8): e("v_add_f32 %s, %s, %s" % (v(t + k), v(t + k), v(t + 8 + k)))
    for k in range(4):
        e("v_cvt_pk_bf16_f32 %s, %s, %s" % (v(t + 8 + k), v(t + 2 * k), v(t + 2 * k + 1)))
    e("v_lshrrev_b32 %s, 2, %s" % (v(t), v(vL)))
    e("v_and_b32 %s, 3, %s" % (v(t), v(t)))
    for tt in range(4):
        e("v_cmp_eq_u32 vcc, %d, %s" % (tt, v(t))); nop(2)
        for k in range(4): e("v_cndmask_b32 %s, 0, %s, vcc" % (v(QB + 4 * tt + k), v(t + 8 + k)))
    nop(2)

dq = []; did = {}
def issue_direct(upto, n=999):
    while dq and dq[0] <= upto and n > 0:
        u = dq.pop(0); k, r = ksrc(u); n -= 1
        did[u] = load_lds(u, P["polK"]) if k == "L" else load(r, vK, sK, u * 1024, P["polK"])
def touch(names, areg, dreg):
    for nm in names:
        e("s_lshl_b32 s%d, s%d, 2" % (sT0, sB)); e("s_add_u32 s%d, s%d, s%d" % (sT0, sT0, sW))
        sr = srd({"wo": sWO, "w2": sW2, "w1": sW1, "wq": sWQ}[nm])
        if nm in ("wo", "w2"):
            e("s_lshl_b32 s%d, s%d, 12" % (sT0, sT0))
            e("v_lshlrev_b32 %s, 4, %s" % (v(areg), v(vL)))
            for k in range(4):
                vmem("buffer_load_dwordx4 %s, %s, %s, s%d offen offset:%d %s" % (v(dreg, 4), v(areg), sr, sT0, 1024 * k, P["polT"].replace("def", "")))
        else:
            st = 8192 if nm == "wq" else 3584
            e("s_mul_i32 s%d, s%d, %d" % (sT0, sT0, 16 * st))
            e("v_lshrrev_b32 %s, 4, %s" % (v(areg), v(vL))); e("v_mul_u32_u24 %s, %d, %s" % (v(areg), st, v(areg)))
            e("v_and_b32 %s, 15, %s" % (v(vT), v(vL))); e("v_lshl_add_u32 %s, %s, 4, %s" % (v(areg), v(vT), v(areg)))
            for k in range(4):
                vmem("buffer_load_dwordx4 %s, %s, %s, s%d offen %s" % (v(dreg, 4), v(areg), sr, sT0, P["polT"].replace("def", "")))
                if k < 3: e("s_add_u32 s%d, s%d, %d" % (sT0, sT0, 4 * st))
def qk_phase(layer):
    groups = list(range(64))
    def srcs(gi): return [ksrc(4 * gi + t)[0] for t in range(4)]
    if layer == 1 and P["interleave"]:
        st = [g for g in groups if "S" in srcs(g)]; rt = [g for g in groups if "S" not in srcs(g)]
        order = []
        ns, nr_ = len(st), len(rt); ri = 0
        for k, g in enumerate(st):
            order.append(g)
            while ri * ns < (k + 1) * nr_: order.append(rt[ri]); ri += 1
        order += rt[ri:]
    else:
        order = groups
    if layer == 1: dq.clear()
    written = set()
    def reduce(gi, D):
        G, i = gi >> 2, gi & 3
        tmp = A0
        e("v_mov_b32_dpp %s, %s quad_perm:[0,0,0,0] %s" % (v(tmp), v(D), DPP))
        for k in (1, 2, 3):
            e("v_add_f32_dpp %s, %s, %s quad_perm:[%d,%d,%d,%d] %s" % (v(tmp), v(D + k), v(tmp), k, k, k, k, DPP))
        m = {0: 60, 1: sM1, 2: sM2, 3: sM3}[i]
        if G not in written:
            e("v_mov_b32 %s, %s" % (v(SC + G), v(tmp))); written.add(G)
        else:
            e("v_cndmask_b32 %s, %s, %s, s[%d:%d]" % (v(SC + G), v(SC + G), v(tmp), m, m + 1))
    prev = None
    staged = {}
    def stage(gi):
        for t in range(4):
            u = 4 * gi + t
            if ksrc(u)[0] == "L":
                if layer == 0: vwait(did[u])
                e("ds_read_b128 %s, %s offset:%d" % (v(ST + 4 * t, 4), v(vLT), u * 1024))
        staged[gi] = True
    for n, gi in enumerate(order):
        D = D0 if n % 2 == 0 else D1
        if "L" in srcs(gi) and gi not in staged: stage(gi)
        if "L" in srcs(gi): e("s_waitcnt lgkmcnt(0)")
        for t in range(4):
            u = 4 * gi + t; k, r = ksrc(u)
            if layer == 0:
                issue_direct(u + WIN)
                if not dq and hold[0]: hold[0] = False; pump()
            if k == "L": b = v(ST + 4 * t, 4)
            elif k == "R":
                if layer == 0: vwait(did[u])
                b = r
            else: b = ring_get(("K", layer, u))
            e("v_mfma_f32_16x16x32_bf16 %s, %s, %s, %s" % (v(D, 4), b, v(QB + 4 * t, 4), "0" if t == 0 else v(D, 4)))
            if k == "S": ring_done(("K", layer, u))
        if n + 1 < len(order) and "L" in srcs(order[n + 1]): stage(order[n + 1])
        if prev is not None:
            nop(4); reduce(*prev)
        pass
        prev = (gi, D)
    nop(8); reduce(*prev)

def softmax():
    m, t = D0, D0 + 1
    e("v_max3_f32 %s, %s, %s, %s" % (v(m), v(SC), v(SC + 1), v(SC + 2)))
    for k in range(3, 15, 2): e("v_max3_f32 %s, %s, %s, %s" % (v(m), v(m), v(SC + k), v(SC + k + 1)))
    e("v_max_f32 %s, %s, %s" % (v(m), v(m), v(SC + 15)))
    allreduce("v_max_f32", m, t)
    e("s_mov_b32 s%d, 0x%x" % (sT0, f2u(CEXP)))
    e("v_mul_f32 %s, s%d, %s" % (v(t), sT0, v(m)))
    for k in range(16): e("v_fma_f32 %s, %s, s%d, -%s" % (v(SC + k), v(SC + k), sT0, v(t)))
    for k in range(16): e("v_exp_f32 %s, %s" % (v(SC + k), v(SC + k)))
    l = D0 + 2
    nop(1)
    e("v_add_f32 %s, %s, %s" % (v(l), v(SC), v(SC + 1)))
    for k in range(2, 16): e("v_add_f32 %s, %s, %s" % (v(l), v(l), v(SC + k)))
    for k in range(16): e("v_cvt_pk_bf16_f32 %s, %s, %s" % (v(SC + k), v(SC + k), v(SC + k)))
    allreduce("v_add_f32", l, t)
    e("v_mul_f32 %s, s%d, %s" % (v(vT), sT0, v(m)))
    e("v_mov_b32 %s, %s" % (v(ST + 13), v(l)))
    e("v_mov_b32 %s, %s" % (v(ST + 12), v(vT)))
    nop(2)

def combine():
    write_red(RO, D1)
    e("v_mov_b32 %s, s%d" % (v(vT), sW)); e("v_lshlrev_b32 %s, 3, %s" % (v(vT), v(vT)))
    e("v_add_u32 %s, 0x%x, %s" % (v(vT), ML, v(vT)))
    e("ds_write_b64 %s, %s" % (v(vT), v(ST + 12, 2)))
    barrier()
    t = ST
    e("v_mov_b32 %s, 0x%x" % (v(vT), ML))
    e("ds_read_b128 %s, %s" % (v(t, 4), v(vT)))
    e("ds_read_b128 %s, %s offset:16" % (v(t + 4, 4), v(vT)))
    for w in range(4):
        for G in range(2):
            e("ds_read_b32 %s, %s offset:%d" % (v(QB + 2 * w + G), v(vP2), RO - MISC + w * 512 + G * 256))
    e("s_waitcnt lgkmcnt(8)")
    M = t + 8
    e("v_max3_f32 %s, %s, %s, %s" % (v(M), v(t), v(t + 2), v(t + 4)))
    e("v_max_f32 %s, %s, %s" % (v(M), v(M), v(t + 6)))
    for w in range(4): e("v_sub_f32 %s, %s, %s" % (v(t + 2 * w), v(t + 2 * w), v(M)))
    for w in range(4): e("v_exp_f32 %s, %s" % (v(t + 2 * w), v(t + 2 * w)))
    nop(1)
    e("v_mul_f32 %s, %s, %s" % (v(M), v(t), v(t + 1)))
    for w in range(1, 4): e("v_fmac_f32 %s, %s, %s" % (v(M), v(t + 2 * w), v(t + 2 * w + 1)))
    e("v_rcp_f32 %s, %s" % (v(M), v(M)))
    e("s_waitcnt lgkmcnt(0)")
    for G in range(2):
        e("v_mul_f32 %s, %s, %s" % (v(t + 10 + G), v(QB + G), v(t)))
        for w in range(1, 4): e("v_fmac_f32 %s, %s, %s" % (v(t + 10 + G), v(QB + 2 * w + G), v(t + 2 * w)))
        e("v_mul_f32 %s, %s, %s" % (v(t + 10 + G), v(t + 10 + G), v(M)))
        e("v_cvt_pk_bf16_f32 %s, %s, %s" % (v(SC + G), v(t + 10 + G), v(t + 10 + G)))
    nop(2)

def hidden():
    t = ST
    for w in range(4):
        for G in range(2):
            e("ds_read_b32 %s, %s offset:%d" % (v(t + 2 * w + G), v(vP2), RH - MISC + w * 512 + G * 256))
    e("s_waitcnt lgkmcnt(0)")
    for G in range(2):
        for w in range(1, 4): e("v_add_f32 %s, %s, %s" % (v(t + G), v(t + G), v(t + 2 * w + G)))
    round_bf16_pair(t, t + 1, t + 2)
    for G in range(2):
        e("v_mul_f32 %s, 0x%x, %s" % (v(t + 4 + G), f2u(-1.4426950408889634), v(t + G)))
    for G in range(2): e("v_exp_f32 %s, %s" % (v(t + 4 + G), v(t + 4 + G)))
    nop(1)
    for G in range(2): e("v_add_f32 %s, 1.0, %s" % (v(t + 4 + G), v(t + 4 + G)))
    for G in range(2): e("v_rcp_f32 %s, %s" % (v(t + 4 + G), v(t + 4 + G)))
    nop(1)
    for G in range(2):
        e("v_mul_f32 %s, %s, %s" % (v(t + G), v(t + G), v(t + 4 + G)))
        e("v_cvt_pk_bf16_f32 %s, %s, %s" % (v(SC + G), v(t + G), v(t + G)))
    nop(2)

lbl = [0]
def publish(ph, acc, last):
    so = soff(0x1000 * 16 * ph) if ph else "0"
    e("v_add_u32 %s, s%d, %s" % (v(vT), sT2, v(vPST)))
    i = vmem("buffer_store_dwordx4 %s, %s, %s, %s offen sc1" % (v(acc, 4), v(vT), srd(sWS), so))
    hold[0] = False; pump()
    vwait(i)
    e("s_barrier")
    lbl[0] += 1; n = lbl[0]
    e("s_cmp_lg_u32 s%d, 0" % sW); e("s_cbranch_scc1 L_skip%d" % n)
    e("s_mov_b64 exec, 1")
    e("v_mov_b32 %s, s%d" % (v(ST), sB)); e("v_lshlrev_b32 %s, 2, %s" % (v(ST), v(ST)))
    e("v_add_u32 %s, %d, %s" % (v(ST), ph * 32, v(ST)))
    e("v_mov_b32 %s, 1" % v(ST + 1))
    if not last:
        e("buffer_atomic_add %s, %s, %s, 0 offen" % (v(ST + 1), v(ST), srd(sDBG)))
        e("s_mov_b32 s%d, 0" % sCNT)
        lab("L_poll%d" % n)
        e("buffer_load_dword %s, %s, %s, 0 offen sc1" % (v(ST + 2), v(ST), srd(sDBG)))
        e("s_waitcnt vmcnt(0)")
        e("v_readfirstlane_b32 s%d, %s" % (sT0, v(ST + 2)))
        e("s_add_u32 s%d, s%d, 1" % (sCNT, sCNT))
        e("s_cmp_ge_u32 s%d, 32" % sT0); e("s_cbranch_scc1 L_done%d" % n)
        e("s_cmp_ge_u32 s%d, 0x100000" % sCNT); e("s_cbranch_scc1 L_done%d" % n)
        e("s_sleep %d" % P["sleep"]); e("s_branch L_poll%d" % n)
        lab("L_done%d" % n)
    else:
        e("buffer_atomic_add %s, %s, %s, 0 offen sc0" % (v(ST + 1), v(ST), srd(sDBG)))
        e("s_waitcnt vmcnt(0)")
        e("v_mov_b32 %s, 0x%x" % (v(ST), FLG))
        e("ds_write_b32 %s, %s" % (v(ST), v(ST + 1)))
    e("s_mov_b64 exec, -1")
    lab("L_skip%d" % n)
    barrier()
    if last:
        e("v_mov_b32 %s, 0x%x" % (v(ST), FLG))
        e("ds_read_b32 %s, %s" % (v(ST + 1), v(ST))); e("s_waitcnt lgkmcnt(0)")
        e("v_readfirstlane_b32 s%d, %s" % (sT0, v(ST + 1)))
        e("s_cmp_lg_u32 s%d, 31" % sT0); e("s_cbranch_scc1 L_end")

def gather(ph, npart):
    ids = []
    for i in range(npart // 2):
        off = ph * 65536 + i * 4096
        so = soff(off)
        ids.append(vmem("buffer_load_dwordx4 %s, %s, %s, %s offen sc1" % (v(POOL + 4 * i, 4), v(vPLD), srd(sWS), so)))
    for i in range(1, npart // 2):
        if i == 1: vwait(ids[0])
        vwait(ids[i])
        for k in range(4): e("v_add_f32 %s, %s, %s" % (v(POOL + k), v(POOL + k), v(POOL + 4 * i + k)))
    t = POOL + 4
    for k in range(4): e("v_mov_b32 %s, %s" % (v(t + k), v(POOL + k)))
    nop(2)
    for k in range(4): e("v_permlane32_swap_b32 %s, %s" % (v(POOL + k), v(t + k)))
    nop(1)
    for k in range(4): e("v_add_f32 %s, %s, %s" % (v(POOL + k), v(POOL + k), v(t + k)))
    round_bf16_pair(POOL, POOL + 1, t); round_bf16_pair(POOL + 2, POOL + 3, t)
    for k in range(4): e("v_add_f32 %s, %s, %s" % (v(vX + k), v(vX + k), v(POOL + k)))
    round_bf16_pair(vX, vX + 1, t); round_bf16_pair(vX + 2, vX + 3, t)
def x_to_lds():
    e("ds_write_b128 %s, %s offset:%d" % (v(vXW), v(vX, 4), X1 - MISC))
    barrier()

e("s_cmp_ge_u32 s2, 256"); e("s_cbranch_scc1 L_end")
stamp(0)
e("s_load_dwordx16 s[64:79], s[0:1], 0")
e("s_load_dwordx4 s[80:83], s[0:1], 64")
e("s_load_dwordx2 s[84:85], s[0:1], 80")
e("v_lshrrev_b32 %s, 6, v0" % v(vT)); nop(1)
e("v_readfirstlane_b32 s%d, %s" % (sW, v(vT)))
e("v_and_b32 %s, 63, v0" % v(vL))
e("s_and_b32 s%d, s2, 31" % sH); e("s_lshr_b32 s%d, s2, 5" % sB)
e("s_waitcnt lgkmcnt(0)")
stamp(2)
def mk(srdr, pair, off_s, shift, size, mul=None):
    if mul is None:
        e("s_lshl_b32 s%d, s%d, %d" % (sT0, off_s, shift))
        e("s_lshr_b32 s%d, s%d, %d" % (sT1, off_s, 32 - shift))
        e("s_add_u32 s%d, s%d, s%d" % (srdr, pair, sT0)); e("s_addc_u32 s%d, s%d, s%d" % (srdr + 1, pair + 1, sT1))
    e("s_mov_b32 s%d, 0x%x" % (srdr + 2, size)); e("s_mov_b32 s%d, 0x20000" % (srdr + 3))
mk(sK, 66, 2, 20, 1 << 20); mk(sV, 68, 2, 20, 1 << 20)
mk(sX, 64, sB, 10, 1024); mk(sOUT, 80, sB, 10, 1024)
mk(sWS, 84, sB, 18, 1 << 18)
mk(sWQ, 70, sH, 8, 0); e("s_sub_u32 s%d, 0x400000, s%d" % (sWQ + 2, sT0))
mk(sWO, 72, sH, 17, 1 << 17)
e("s_min_u32 s%d, s%d, 13" % (sT2, sH))
mk(sW1, 76, sT2, 8, 0); e("s_sub_u32 s%d, 0x%x, s%d" % (sW1 + 2, 512 * 3584, sT0))
mk(sW2, 78, sT2, 17, 1 << 17)
e("s_cmp_lt_u32 s%d, 14" % sH)
e("s_cselect_b32 s%d, s%d, 0" % (sW1 + 2, sW1 + 2)); e("s_cselect_b32 s%d, s%d, 0" % (sW2 + 2, sW2 + 2))
e("s_mov_b32 s%d, s82" % sDBG); e("s_mov_b32 s%d, s83" % (sDBG + 1)); e("s_mov_b32 s%d, 256" % (sDBG + 2)); e("s_mov_b32 s%d, 0x20000" % (sDBG + 3))
e("s_lshl_b32 s%d, s%d, 11" % (sT2, sH))
e("s_mul_i32 s%d, s%d, %d" % (sLB, sW, LW))
for m, val in ((60, 0x11111111), (sM1, 0x22222222), (sM2, 0x44444444), (sM3, 0x88888888)):
    e("s_mov_b32 s%d, 0x%x" % (m, val)); e("s_mov_b32 s%d, 0x%x" % (m + 1, val))
c, g, w_, t3, t4 = ST, ST + 1, ST + 2, ST + 3, ST + 4
e("v_and_b32 %s, 15, %s" % (v(c), v(vL))); e("v_lshrrev_b32 %s, 4, %s" % (v(g), v(vL)))
e("v_mov_b32 %s, s%d" % (v(w_), sW))
e("v_and_b32 %s, 31, %s" % (v(t3), v(vL)))
e("v_lshlrev_b32 %s, 3, %s" % (v(t4), v(t3))); e("v_lshl_add_u32 %s, %s, 8, %s" % (v(ST + 5), v(w_), v(t4)))
xid = vmem("buffer_load_dwordx2 %s, %s, %s, 0 offen" % (v(vX, 2), v(ST + 5), srd(sX)))
e("v_lshl_add_u32 %s, %s, 7, %s" % (v(t4), v(w_), v(g)))
e("v_lshlrev_b32 %s, 4, %s" % (v(ST + 6), v(c)))
e("v_lshl_add_u32 %s, %s, 13, %s" % (v(vWQ), v(t4), v(ST + 6)))
e("v_lshrrev_b32 %s, 2, %s" % (v(vK), v(c))); e("v_lshlrev_b32 %s, 8, %s" % (v(vK), v(vK)))
e("v_and_b32 %s, 3, %s" % (v(vT), v(c))); e("v_lshl_add_u32 %s, %s, 2, %s" % (v(vT), v(g), v(vT)))
e("v_lshl_add_u32 %s, %s, 4, %s" % (v(vK), v(vT), v(vK))); e("v_lshl_add_u32 %s, %s, 18, %s" % (v(vK), v(w_), v(vK)))
dq.extend(range(NL + NA + NV))
q_W("wq", 0); q_streamK(0); q_V(0); q_W("wo", 0); q_W("w1", 0); q_W("w2", 0)
q_W("wq", 1); q_streamK(1); q_V(1); q_W("wo", 1); q_W("w1", 1); q_W("w2", 1)
for t in range(NR):
    tag, vo, s_, off, pol = ringq.pop(0); sl = free_slots.pop(0)
    landed[tag] = (sl, load(v(RING + 4 * sl, 4), vo, s_, off, pol))
    if t < P["pre"]: issue_direct(999, 1)
e("v_lshlrev_b32 %s, 4, %s" % (v(vV), v(vL))); e("v_mov_b32 %s, %s" % (v(vLT), v(vV)))
e("v_lshl_add_u32 %s, %s, 18, %s" % (v(vV), v(w_), v(vV)))
e("v_add_u32 %s, s%d, %s" % (v(vLT), sLB, v(vLT)))
e("s_mov_b32 s%d, 3584" % sT0); e("v_mul_lo_u32 %s, %s, s%d" % (v(vW1), v(t4), sT0)); e("v_add_u32 %s, %s, %s" % (v(vW1), v(vW1), v(ST + 6)))
e("v_lshl_add_u32 %s, %s, 10, %s" % (v(vWO), v(g), v(ST + 6))); e("v_lshl_add_u32 %s, %s, 8, %s" % (v(vWO), v(w_), v(vWO)))
e("v_lshlrev_b32 %s, 5, %s" % (v(vPST), v(c))); e("v_lshl_add_u32 %s, %s, 4, %s" % (v(vPST), v(g), v(vPST)))
e("v_lshl_add_u32 %s, %s, 9, %s" % (v(vPST), v(w_), v(vPST)))
e("v_add_u32 %s, 0x%x, %s" % (v(vRW), MISC, v(vPST)))
e("v_mov_b32 %s, 0x80000000" % v(vT)); e("v_cmp_gt_u32 vcc, 32, %s" % v(vL)); nop(2)
e("v_cndmask_b32 %s, %s, %s, vcc" % (v(vPST), v(vT), v(vPST)))
e("v_lshlrev_b32 %s, 4, %s" % (v(vXW), v(t3))); e("v_lshl_add_u32 %s, %s, 9, %s" % (v(vXW), v(w_), v(vXW)))
e("v_lshrrev_b32 %s, 5, %s" % (v(vT), v(vL))); e("v_lshl_add_u32 %s, %s, 11, %s" % (v(vPLD), v(vT), v(vXW)))
e("v_add_u32 %s, 0x%x, %s" % (v(vXW), MISC, v(vXW)))
e("v_lshlrev_b32 %s, 4, %s" % (v(vP2), v(c))); e("v_lshl_add_u32 %s, %s, 2, %s" % (v(vP2), v(g), v(vP2)))
e("v_add_u32 %s, 0x%x, %s" % (v(vP2), MISC, v(vP2))); e("v_lshl_add_u32 %s, %s, 9, %s" % (v(vP2X), v(w_), v(vP2)))
e("v_and_b32 %s, 3, %s" % (v(vT), v(c))); e("v_lshl_add_u32 %s, %s, 2, %s" % (v(vT), v(g), v(vT)))
e("v_lshlrev_b32 %s, 5, %s" % (v(vQ), v(vT))); e("v_add_u32 %s, 0x%x, %s" % (v(vQ), MISC, v(vQ)))
e("v_lshlrev_b32 %s, 5, %s" % (v(vLN), v(vL))); e("v_add_u32 %s, 0x%x, %s" % (v(vLN), MISC, v(vLN)))
for k in range(4):
    e("v_mov_b32 %s, 0" % v(vM + k))
    e("v_mov_b32 %s, 0xffff" % v(vT)); e("v_cmp_eq_u32 vcc, %d, %s" % (2 * k, v(c))); nop(2)
    e("v_cndmask_b32 %s, %s, %s, vcc" % (v(vM + k), v(vM + k), v(vT)))
    e("v_mov_b32 %s, 0xffff0000" % v(vT)); e("v_cmp_eq_u32 vcc, %d, %s" % (2 * k + 1, v(c))); nop(2)
    e("v_cndmask_b32 %s, %s, %s, vcc" % (v(vM + k), v(vM + k), v(vT)))
stamp(2)
vwait(xid)
stamp(2)
e("v_and_b32 %s, 0xffff0000, %s" % (v(vX + 3), v(vX + 1))); e("v_lshlrev_b32 %s, 16, %s" % (v(vX + 2), v(vX + 1)))
e("v_and_b32 %s, 0xffff0000, %s" % (v(vX + 1), v(vX))); e("v_lshlrev_b32 %s, 16, %s" % (v(vX), v(vX)))

def q_phase(layer):
    x_to_lds(); stamp(2); layernorm(); stamp(2)
    tiles = ring_tiles("wq", layer, 32, wp)
    def qhook(i):
        if layer == 0:
            if i == 32 - NR - 1: hold[0] = True
            issue_direct(NL + NA + NV, P["qissue"])
            if i == P["touch0"]: touch(["wo", "w1", "w2"], ST + 14, SC + 12)
    gemv(tiles, D0, hook=qhook); stamp(2)
    write_red(RQ, D0); barrier(); stamp(2); make_qB(); stamp(2)
def pvp(u): return (SC + (u >> 4), 4 * (u & 3) + ((u >> 2) & 3))

q_phase(0)
stamp()
for layer in range(2):
    e("; ---------------- layer %d attention ----------------" % layer)
    deep[0] = False
    qk_phase(layer)
    stamp()
    softmax()
    def vhook(i, layer=layer):
        if i == P["touch2"]: touch(["wo"], ST + 14, ST + 8)
        if i == P["touch3"]: touch(["w1", "w2", "wq"] if layer == 0 else ["w1", "w2"], ST + 14, ST + 8)
    gemv(ring_tiles("V", layer, 256, pvp), D1, hook=vhook)
    stamp()
    combine()
    deep[0] = True
    gemv(ring_tiles("wo", layer, 32, wp), D0, hold_tail=True)
    stamp()
    publish(2 * layer, D0, False)
    stamp()
    gather(2 * layer, 32)
    e("; ---------------- layer %d ffn ----------------" % layer)
    x_to_lds(); layernorm()
    gemv(ring_tiles("w1", layer, 32, wp), D0)
    write_red(RH, D0); barrier(); hidden()
    gemv(ring_tiles("w2", layer, 32, wp), D0, hold_tail=True)
    stamp()
    publish(2 * layer + 1, D0, layer == 1)
    if layer == 0: stamp()
    gather(2 * layer + 1, 14)
    if layer == 0: q_phase(1); stamp()
assert not ringq and not landed
e("v_cvt_pk_bf16_f32 %s, %s, %s" % (v(ST), v(vX), v(vX + 1)))
e("v_cvt_pk_bf16_f32 %s, %s, %s" % (v(ST + 1), v(vX + 2), v(vX + 3)))
e("v_subrev_u32 %s, 0x%x, %s" % (v(ST + 2), MISC, v(vXW)))
e("v_lshrrev_b32 %s, 1, %s" % (v(ST + 2), v(ST + 2)))
exec_lo()
vmem("buffer_store_dwordx2 %s, %s, %s, 0 offen" % (v(ST, 2), v(ST + 2), srd(sOUT)))
vwait_all()
lab("L_end")
if P["stamps"]:
    e("s_cmp_ge_u32 s2, 256"); e("s_cbranch_scc1 L_end2")
    stamp(0)
    e("s_add_u32 s%d, s84, 0x400000" % sWS); e("s_addc_u32 s%d, s85, 0" % (sWS + 1))
    e("s_lshl_b32 s54, s2, 2"); e("s_add_u32 s54, s54, s44"); e("s_lshl_b32 s54, s54, 6")
    e("s_mov_b64 exec, 1")
    for k in range(nst[0]):
        e("v_mov_b32 v1, s%d" % (86 + k)); e("v_mov_b32 v2, s54")
        e("buffer_store_dword v1, v2, %s, 0 offen offset:%d" % (srd(sWS), 4 * k)); e("s_waitcnt vmcnt(0)")
    lab("L_end2")
e("s_endpgm")

hdr = """; Persistent 2-layer decode step: one workgroup per (batch, head); K tiles kept on chip between the layers.
; @launch grid=(256,1,1) block=(256,1,1) lds=%d
.amdgcn_target "amdgcn-amd-amdhsa--gfx950"
.text
.globl %s
.p2align 8
.type %s,@function
%s:
""" % (LDS_BYTES, KN, KN, KN)
ftr = """
.section .rodata,"a"
.p2align 6
.amdhsa_kernel %s
  .amdhsa_next_free_vgpr 512
  .amdhsa_next_free_sgpr 102
  .amdhsa_accum_offset 256
  .amdhsa_group_segment_fixed_size 0
  .amdhsa_kernarg_size 88
  .amdhsa_user_sgpr_count 2
  .amdhsa_user_sgpr_kernarg_segment_ptr 1
  .amdhsa_system_sgpr_workgroup_id_x 1
.end_amdhsa_kernel
""" % KN
open(sys.argv[1], "w").write(hdr + "\n".join(l.strip() if not l.endswith(":") else l for l in out) + ftr)
print("lines", len(out), "NV", NV, "NS", NS, "RET", RET, "LDS", LDS_BYTES)
```

```python
import sys
KN = "interleave_layers__mha_block_cached__dense_activation_silu__decode_kernel"
P = dict(NR=8, NL=36, WIN=8, polK="nt", polV="nt", polK2="nt", polV2="nt", sleep=1, interleave=1, stamps=0, touch1=12, touch2=200, touch3=200, qissue=1, km=2, kk=0, vm=2, vk=0, WS=8, polW="def", polT="def", pre=8, touch0=999)
for a in sys.argv[2:]:
    k, v = a.split("=")
    P[k] = int(v) if v.lstrip("-").isdigit() else v
NR, NL, WIN = P["NR"], P["NL"], P["WIN"]

out = []
def e(s): out.append("    " + s)
def lab(s): out.append(s + ":")
def nop(n): e("s_nop %d" % (n - 1))

sK, sV, sWQ, sWO, sW1, sW2, sWS, sDBG, sX, sOUT = 4, 8, 12, 16, 20, 24, 28, 32, 36, 40
sW, sOFF, sH, sB = 44, 45, 46, 47
sM1, sM2, sM3 = 48, 50, 52
sT0, sT1, sT2, sCNT, sLB = 54, 55, 56, 57, 58
def srd(r): return "s[%d:%d]" % (r, r + 3)
vL, vK, vV, vWQ, vW1, vWO, vPST, vPLD, vLT, vP2, vP2X, vRW, vXW, vQ, vLN, vT = range(16)
vM = 16; vX = 20
RING = 24
POOL = RING + 4 * NR
QB = POOL; SC = POOL + 16; D0 = POOL + 32; D1 = POOL + 36; A0 = POOL + 40; A1 = POOL + 44; ST = POOL + 48
RET = POOL + 64
NV = (256 - RET) // 4
NA = 64
NS = 256 - NL - NA - NV
def v(r, n=1): return "v%d" % r if n == 1 else "v[%d:%d]" % (r, r + n - 1)
def a(r, n=4): return "a[%d:%d]" % (r, r + n - 1)
LW = NL * 1024
MISC = 4 * LW
X1, RQ, RO, RH, ML, FLG = MISC, MISC + 2048, MISC + 4096, MISC + 6144, MISC + 8192, MISC + 8256
LDS_BYTES = MISC + 8320
assert LDS_BYTES <= 163840
CEXP = 1.4426950408889634 / (128 ** 0.5)
import struct
def f2u(x): return struct.unpack("<I", struct.pack("<f", x))[0]

vm = []; vmid = [0]
def vmem(s):
    e(s); vmid[0] += 1; vm.append(vmid[0]); return vmid[0]
def vwait(i):
    if i in vm:
        k = vm.index(i); n = len(vm) - 1 - k
        e("s_waitcnt vmcnt(%d)" % min(n, 63))
        del vm[:k + 1]
def vwait_all():
    e("s_waitcnt vmcnt(0)"); vm.clear()
cur_off = [None]
def soff(x):
    if x == 0: return "0"
    if cur_off[0] != x:
        e("s_mov_b32 s%d, 0x%x" % (sOFF, x)); cur_off[0] = x
    return "s%d" % sOFF
def load(dst, vo, s, off, pol=""):
    so = soff(off & ~4095)
    return vmem("buffer_load_dwordx4 %s, %s, %s, %s offen offset:%d %s" % (dst, v(vo), srd(s), so, off & 4095, pol if pol != "def" else ""))
def load_lds(tile, pol):
    off = tile * 1024
    so = soff(off & ~4095)
    if tile % 4 == 0 or True:
        e("s_add_u32 m0, s%d, 0x%x" % (sLB, off & ~4095)); nop(1)
    return vmem("buffer_load_dwordx4 %s, %s, %s offen offset:%d %s lds" % (v(vK), srd(sK), so, off & 4095, pol if pol != "def" else ""))

nst = [0]
def stamp(lvl=1):
    if P["stamps"] != lvl and not (lvl == 0 and P["stamps"]): return
    if nst[0] >= 16: return
    e("s_memrealtime s[62:63]"); e("s_waitcnt lgkmcnt(0)"); e("s_mov_b32 s%d, s62" % (86 + nst[0])); nst[0] += 1
ringq = []
free_slots = list(range(NR))
landed = {}
hold = [False]
deep = [False]
def pump():
    while ringq and free_slots and not hold[0]:
        if ringq[0][0][0] in ("K", "V") and not deep[0] and len(landed) >= P["WS"]: break
        tag, vo, s, off, pol = ringq.pop(0)
        sl = free_slots.pop(0)
        landed[tag] = (sl, load(v(RING + 4 * sl, 4), vo, s, off, pol))
def ring_get(tag):
    if tag not in landed:
        assert not hold[0]; pump()
    sl, i = landed[tag]; vwait(i); return v(RING + 4 * sl, 4)
def ring_done(tag):
    sl, _ = landed.pop(tag); free_slots.append(sl); pump()

def ksrc(u):
    if u < NL: return ("L", u)
    if u < NL + NA: return ("R", a(4 * (u - NL)))
    if u < NL + NA + NV: return ("R", v(RET + 4 * (u - NL - NA), 4))
    return ("S", None)
def q_streamK(layer):
    for u in range(NL + NA + NV, 256):
        ringq.append((("K", layer, u), vK, sK, u * 1024, (("def" if u % P["km"] < P["kk"] else P["polK"]) if layer == 0 else P["polK2"])))
def q_V(layer):
    for u in range(256):
        ringq.append((("V", layer, u), vV, sV, u * 1024, (("def" if u % P["vm"] < P["vk"] else P["polV"]) if layer == 0 else P["polV2"])))
def q_W(name, layer):
    vo, s, stride = {"wo": (vWO, sWO, 4096), "w2": (vWO, sW2, 4096), "wq": (vWQ, sWQ, 4 * 8192), "w1": (vW1, sW1, 4 * 3584)}[name]
    for t in range(32):
        ringq.append(((name, layer, t), vo, s, t * stride, P["polW"]))

DPP = "row_mask:0xf bank_mask:0xf"
def allreduce(op, x, t):
    for r in (8, 4, 2, 1):
        nop(2); e("%s_dpp %s, %s, %s row_ror:%d %s" % (op, v(x), v(x), v(x), r, DPP))
    for sw in ("v_permlane16_swap_b32", "v_permlane32_swap_b32"):
        e("v_mov_b32 %s, %s" % (v(t), v(x))); nop(2)
        e("%s %s, %s" % (sw, v(x), v(t))); nop(1)
        e("%s %s, %s, %s" % (op, v(x), v(x), v(t)))
def barrier():
    e("s_waitcnt lgkmcnt(0)"); e("s_barrier")
def exec_lo(): e("s_mov_b32 exec_hi, 0")
def exec_all(): e("s_mov_b32 exec_hi, -1")
def buildA(dst, p, j):
    for k in range(4):
        e("v_and_b32_dpp %s, %s, %s row_newbcast:%d %s" % (v(dst + k), v(p), v(vM + k), j, DPP))
def gemv(tiles, acc, hold_tail=False, hook=None):
    n = len(tiles)
    buildA(A0, tiles[0][2], tiles[0][3])
    for i, (get, done, p, j) in enumerate(tiles):
        if hold_tail and i == n - NR: hold[0] = True
        cur = A0 if i % 2 == 0 else A1
        nxt = A1 if i % 2 == 0 else A0
        if i + 1 < n: buildA(nxt, tiles[i + 1][2], tiles[i + 1][3])
        else: nop(2)
        b = get()
        e("v_mfma_f32_16x16x32_bf16 %s, %s, %s, %s" % (v(acc, 4), v(cur, 4), b, "0" if i == 0 else v(acc, 4)))
        done()
        if hook: hook(i)
    nop(8)
def ring_tiles(name, layer, n, pfn):
    r = []
    for t in range(n):
        tag = (name, layer, t); p, j = pfn(t)
        r.append((lambda tag=tag: ring_get(tag), lambda tag=tag: ring_done(tag), p, j))
    return r
def round_bf16_pair(x, y, t):
    e("v_cvt_pk_bf16_f32 %s, %s, %s" % (v(t), v(x), v(y)))
    e("v_lshlrev_b32 %s, 16, %s" % (v(x), v(t)))
    e("v_and_b32 %s, 0xffff0000, %s" % (v(y), v(t)))

def layernorm():
    t = ST
    e("ds_read_b128 %s, %s offset:%d" % (v(t, 4), v(vLN), X1 - MISC))
    e("ds_read_b128 %s, %s offset:%d" % (v(t + 4, 4), v(vLN), X1 - MISC + 16))
    e("ds_read_b32 %s, %s offset:%d" % (v(t + 12), v(vP2X), X1 - MISC))
    e("ds_read_b32 %s, %s offset:%d" % (v(t + 13), v(vP2X), X1 - MISC + 256))
    e("s_waitcnt lgkmcnt(2)")
    s = t + 8
    e("v_add_f32 %s, %s, %s" % (v(s), v(t), v(t + 1)))
    for k in range(2, 8): e("v_add_f32 %s, %s, %s" % (v(s), v(s), v(t + k)))
    allreduce("v_add_f32", s, t + 9)
    e("v_mul_f32 %s, 0x%x, %s" % (v(s), f2u(1.0 / 512), v(s)))
    for k in range(8): e("v_sub_f32 %s, %s, %s" % (v(t + k), v(t + k), v(s)))
    q = t + 10
    e("v_mul_f32 %s, %s, %s" % (v(q), v(t), v(t)))
    for k in range(1, 8): e("v_fmac_f32 %s, %s, %s" % (v(q), v(t + k), v(t + k)))
    allreduce("v_add_f32", q, t + 9)
    e("v_mov_b32 %s, 0x%x" % (v(t + 9), f2u(1e-5)))
    e("v_fmac_f32 %s, 0x%x, %s" % (v(t + 9), f2u(1.0 / 512), v(q)))
    e("v_rsq_f32 %s, %s" % (v(q), v(t + 9)))
    e("s_waitcnt lgkmcnt(0)")
    for k in range(2):
        e("v_sub_f32 %s, %s, %s" % (v(t + 12 + k), v(t + 12 + k), v(s)))
        e("v_mul_f32 %s, %s, %s" % (v(t + 12 + k), v(t + 12 + k), v(q)))
        e("v_cvt_pk_bf16_f32 %s, %s, %s" % (v(SC + k), v(t + 12 + k), v(t + 12 + k)))
    nop(2)
def write_red(area, acc):
    exec_lo()
    e("ds_write_b128 %s, %s offset:%d" % (v(vRW), v(acc, 4), area - MISC))
    exec_all()
def wp(t): return (SC + (t >> 4), t & 15)

def make_qB():
    t = ST
    for w in range(4):
        d = t if w == 0 else t + 8
        e("ds_read_b128 %s, %s offset:%d" % (v(d, 4), v(vQ), RQ - MISC + w * 512))
        e("ds_read_b128 %s, %s offset:%d" % (v(d + 4, 4), v(vQ), RQ - MISC + w * 512 + 16))
        if w > 0:
            e("s_waitcnt lgkmcnt(0)")
            for k in range(8): e("v_add_f32 %s, %s, %s" % (v(t + k), v(t + k), v(t + 8 + k)))
    for k in range(4):
        e("v_cvt_pk_bf16_f32 %s, %s, %s" % (v(t + 8 + k), v(t + 2 * k), v(t + 2 * k + 1)))
    e("v_lshrrev_b32 %s, 2, %s" % (v(t), v(vL)))
    e("v_and_b32 %s, 3, %s" % (v(t), v(t)))
    for tt in range(4):
        e("v_cmp_eq_u32 vcc, %d, %s" % (tt, v(t))); nop(2)
        for k in range(4): e("v_cndmask_b32 %s, 0, %s, vcc" % (v(QB + 4 * tt + k), v(t + 8 + k)))
    nop(2)

dq = []; did = {}
def issue_direct(upto, n=999):
    while dq and dq[0] <= upto and n > 0:
        u = dq.pop(0); k, r = ksrc(u); n -= 1
        did[u] = load_lds(u, P["polK"]) if k == "L" else load(r, vK, sK, u * 1024, P["polK"])
def touch(names, areg, dreg):
    for nm in names:
        e("s_lshl_b32 s%d, s%d, 2" % (sT0, sB)); e("s_add_u32 s%d, s%d, s%d" % (sT0, sT0, sW))
        sr = srd({"wo": sWO, "w2": sW2, "w1": sW1, "wq": sWQ}[nm])
        if nm in ("wo", "w2"):
            e("s_lshl_b32 s%d, s%d, 12" % (sT0, sT0))
            e("v_lshlrev_b32 %s, 4, %s" % (v(areg), v(vL)))
            for k in range(4):
                vmem("buffer_load_dwordx4 %s, %s, %s, s%d offen offset:%d %s" % (v(dreg, 4), v(areg), sr, sT0, 1024 * k, P["polT"].replace("def", "")))
        else:
            st = 8192 if nm == "wq" else 3584
            e("s_mul_i32 s%d, s%d, %d" % (sT0, sT0, 16 * st))
            e("v_lshrrev_b32 %s, 4, %s" % (v(areg), v(vL))); e("v_mul_u32_u24 %s, %d, %s" % (v(areg), st, v(areg)))
            e("v_and_b32 %s, 15, %s" % (v(vT), v(vL))); e("v_lshl_add_u32 %s, %s, 4, %s" % (v(areg), v(vT), v(areg)))
            for k in range(4):
                vmem("buffer_load_dwordx4 %s, %s, %s, s%d offen %s" % (v(dreg, 4), v(areg), sr, sT0, P["polT"].replace("def", "")))
                if k < 3: e("s_add_u32 s%d, s%d, %d" % (sT0, sT0, 4 * st))
def qk_phase(layer):
    groups = list(range(64))
    def srcs(gi): return [ksrc(4 * gi + t)[0] for t in range(4)]
    if layer == 1 and P["interleave"]:
        st = [g for g in groups if "S" in srcs(g)]; rt = [g for g in groups if "S" not in srcs(g)]
        order = []
        ns, nr_ = len(st), len(rt); ri = 0
        for k, g in enumerate(st):
            order.append(g)
            while ri * ns < (k + 1) * nr_: order.append(rt[ri]); ri += 1
        order += rt[ri:]
    else:
        order = groups
    if layer == 1: dq.clear()
    written = set()
    def reduce(gi, D):
        G, i = gi >> 2, gi & 3
        tmp = A0
        e("v_mov_b32_dpp %s, %s quad_perm:[0,0,0,0] %s" % (v(tmp), v(D), DPP))
        for k in (1, 2, 3):
            e("v_add_f32_dpp %s, %s, %s quad_perm:[%d,%d,%d,%d] %s" % (v(tmp), v(D + k), v(tmp), k, k, k, k, DPP))
        m = {0: 60, 1: sM1, 2: sM2, 3: sM3}[i]
        if G not in written:
            e("v_mov_b32 %s, %s" % (v(SC + G), v(tmp))); written.add(G)
        else:
            e("v_cndmask_b32 %s, %s, %s, s[%d:%d]" % (v(SC + G), v(SC + G), v(tmp), m, m + 1))
    prev = None
    staged = {}
    def stage(gi):
        for t in range(4):
            u = 4 * gi + t
            if ksrc(u)[0] == "L":
                if layer == 0: vwait(did[u])
                e("ds_read_b128 %s, %s offset:%d" % (v(ST + 4 * t, 4), v(vLT), u * 1024))
        staged[gi] = True
    for n, gi in enumerate(order):
        D = D0 if n % 2 == 0 else D1
        if "L" in srcs(gi) and gi not in staged: stage(gi)
        if "L" in srcs(gi): e("s_waitcnt lgkmcnt(0)")
        for t in range(4):
            u = 4 * gi + t; k, r = ksrc(u)
            if layer == 0:
                issue_direct(u + WIN)
                if not dq and hold[0]: hold[0] = False; pump()
            if k == "L": b = v(ST + 4 * t, 4)
            elif k == "R":
                if layer == 0: vwait(did[u])
                b = r
            else: b = ring_get(("K", layer, u))
            e("v_mfma_f32_16x16x32_bf16 %s, %s, %s, %s" % (v(D, 4), b, v(QB + 4 * t, 4), "0" if t == 0 else v(D, 4)))
            if k == "S": ring_done(("K", layer, u))
        if n + 1 < len(order) and "L" in srcs(order[n + 1]): stage(order[n + 1])
        if prev is not None:
            nop(4); reduce(*prev)
        pass
        prev = (gi, D)
    nop(8); reduce(*prev)

def softmax():
    m, t = D0, D0 + 1
    e("v_max3_f32 %s, %s, %s, %s" % (v(m), v(SC), v(SC + 1), v(SC + 2)))
    for k in range(3, 15, 2): e("v_max3_f32 %s, %s, %s, %s" % (v(m), v(m), v(SC + k), v(SC + k + 1)))
    e("v_max_f32 %s, %s, %s" % (v(m), v(m), v(SC + 15)))
    allreduce("v_max_f32", m, t)
    e("s_mov_b32 s%d, 0x%x" % (sT0, f2u(CEXP)))
    e("v_mul_f32 %s, s%d, %s" % (v(t), sT0, v(m)))
    for k in range(16): e("v_fma_f32 %s, %s, s%d, -%s" % (v(SC + k), v(SC + k), sT0, v(t)))
    for k in range(16): e("v_exp_f32 %s, %s" % (v(SC + k), v(SC + k)))
    l = D0 + 2
    nop(1)
    e("v_add_f32 %s, %s, %s" % (v(l), v(SC), v(SC + 1)))
    for k in range(2, 16): e("v_add_f32 %s, %s, %s" % (v(l), v(l), v(SC + k)))
    for k in range(16): e("v_cvt_pk_bf16_f32 %s, %s, %s" % (v(SC + k), v(SC + k), v(SC + k)))
    allreduce("v_add_f32", l, t)
    e("v_mul_f32 %s, s%d, %s" % (v(vT), sT0, v(m)))
    e("v_mov_b32 %s, %s" % (v(ST + 13), v(l)))
    e("v_mov_b32 %s, %s" % (v(ST + 12), v(vT)))
    nop(2)

def combine():
    write_red(RO, D1)
    e("v_mov_b32 %s, s%d" % (v(vT), sW)); e("v_lshlrev_b32 %s, 3, %s" % (v(vT), v(vT)))
    e("v_add_u32 %s, 0x%x, %s" % (v(vT), ML, v(vT)))
    e("ds_write_b64 %s, %s" % (v(vT), v(ST + 12, 2)))
    barrier()
    t = ST
    e("v_mov_b32 %s, 0x%x" % (v(vT), ML))
    e("ds_read_b128 %s, %s" % (v(t, 4), v(vT)))
    e("ds_read_b128 %s, %s offset:16" % (v(t + 4, 4), v(vT)))
    for w in range(4):
        for G in range(2):
            e("ds_read_b32 %s, %s offset:%d" % (v(QB + 2 * w + G), v(vP2), RO - MISC + w * 512 + G * 256))
    e("s_waitcnt lgkmcnt(8)")
    M = t + 8
    e("v_max3_f32 %s, %s, %s, %s" % (v(M), v(t), v(t + 2), v(t + 4)))
    e("v_max_f32 %s, %s, %s" % (v(M), v(M), v(t + 6)))
    for w in range(4): e("v_sub_f32 %s, %s, %s" % (v(t + 2 * w), v(t + 2 * w), v(M)))
    for w in range(4): e("v_exp_f32 %s, %s" % (v(t + 2 * w), v(t + 2 * w)))
    nop(1)
    e("v_mul_f32 %s, %s, %s" % (v(M), v(t), v(t + 1)))
    for w in range(1, 4): e("v_fmac_f32 %s, %s, %s" % (v(M), v(t + 2 * w), v(t + 2 * w + 1)))
    e("v_rcp_f32 %s, %s" % (v(M), v(M)))
    e("s_waitcnt lgkmcnt(0)")
    for G in range(2):
        e("v_mul_f32 %s, %s, %s" % (v(t + 10 + G), v(QB + G), v(t)))
        for w in range(1, 4): e("v_fmac_f32 %s, %s, %s" % (v(t + 10 + G), v(QB + 2 * w + G), v(t + 2 * w)))
        e("v_mul_f32 %s, %s, %s" % (v(t + 10 + G), v(t + 10 + G), v(M)))
        e("v_cvt_pk_bf16_f32 %s, %s, %s" % (v(SC + G), v(t + 10 + G), v(t + 10 + G)))
    nop(2)

def hidden():
    t = ST
    for w in range(4):
        for G in range(2):
            e("ds_read_b32 %s, %s offset:%d" % (v(t + 2 * w + G), v(vP2), RH - MISC + w * 512 + G * 256))
    e("s_waitcnt lgkmcnt(0)")
    for G in range(2):
        for w in range(1, 4): e("v_add_f32 %s, %s, %s" % (v(t + G), v(t + G), v(t + 2 * w + G)))
    round_bf16_pair(t, t + 1, t + 2)
    for G in range(2):
        e("v_mul_f32 %s, 0x%x, %s" % (v(t + 4 + G), f2u(-1.4426950408889634), v(t + G)))
    for G in range(2): e("v_exp_f32 %s, %s" % (v(t + 4 + G), v(t + 4 + G)))
    nop(1)
    for G in range(2): e("v_add_f32 %s, 1.0, %s" % (v(t + 4 + G), v(t + 4 + G)))
    for G in range(2): e("v_rcp_f32 %s, %s" % (v(t + 4 + G), v(t + 4 + G)))
    nop(1)
    for G in range(2):
        e("v_mul_f32 %s, %s, %s" % (v(t + G), v(t + G), v(t + 4 + G)))
        e("v_cvt_pk_bf16_f32 %s, %s, %s" % (v(SC + G), v(t + G), v(t + G)))
    nop(2)

lbl = [0]
SPIN = 0x40000
def publish(ph, acc, last):
    npart = 32 if ph % 2 == 0 else 14
    e("s_mov_b32 s%d, 0xfffffffe" % sT0)
    for k in range(4): e("v_min_u32 %s, s%d, %s" % (v(acc + k), sT0, v(acc + k)))
    so = soff(65536 * ph)
    e("v_add_u32 %s, s%d, %s" % (v(vT), sT2, v(vPST)))
    vmem("buffer_store_dwordx4 %s, %s, %s, %s offen sc1" % (v(acc, 4), v(vT), srd(sWS), so))
    if last:
        e("s_cmp_lg_u32 s%d, 31" % sH); e("s_cbranch_scc1 L_end")
    hold[0] = False; pump()
    lbl[0] += 1; n = lbl[0]
    stamp(3)
    e("s_cmp_lg_u32 s%d, 0" % sW); e("s_cbranch_scc1 L_skip%d" % n)
    e("s_mov_b32 s%d, 0" % sCNT)
    if ph == 0:
        e("v_mov_b32 %s, s%d" % (v(ST), sB)); e("v_lshlrev_b32 %s, 2, %s" % (v(ST), v(ST)))
        e("s_mov_b64 exec, 1")
        lab("L_rst%d" % n)
        e("buffer_load_dword %s, %s, %s, 0 offen sc1" % (v(ST + 2), v(ST), srd(sDBG)))
        e("s_waitcnt vmcnt(0)")
        e("v_readfirstlane_b32 s%d, %s" % (sT0, v(ST + 2)))
        e("s_add_u32 s%d, s%d, 1" % (sCNT, sCNT))
        e("s_cmp_ge_u32 s%d, 32" % sT0); e("s_cbranch_scc1 L_rstd%d" % n)
        e("s_cmp_ge_u32 s%d, 0x%x" % (sCNT, SPIN)); e("s_cbranch_scc1 L_rstd%d" % n)
        e("s_sleep 8"); e("s_branch L_rst%d" % n)
        lab("L_rstd%d" % n)
        e("s_mov_b64 exec, -1")
    e("v_lshlrev_b32 %s, 11, %s" % (v(ST), v(vL))); e("v_add_u32 %s, 0x%x, %s" % (v(ST), ph * 65536 + 2044, v(ST)))
    e("s_mov_b32 exec_lo, 0x%x" % ((1 << npart) - 1)); e("s_mov_b32 exec_hi, 0")
    lab("L_poll%d" % n)
    e("buffer_load_dword %s, %s, %s, 0 offen sc1" % (v(ST + 2), v(ST), srd(sWS)))
    e("s_waitcnt vmcnt(0)")
    e("v_cmp_eq_u32 vcc, -1, %s" % v(ST + 2))
    e("s_add_u32 s%d, s%d, 1" % (sCNT, sCNT))
    e("s_nop 3")
    e("s_and_b64 exec, exec, vcc"); e("s_cbranch_scc0 L_done%d" % n)
    e("s_cmp_ge_u32 s%d, 0x%x" % (sCNT, SPIN)); e("s_cbranch_scc1 L_done%d" % n)
    e("s_sleep %d" % P["sleep"]); e("s_branch L_poll%d" % n)
    lab("L_done%d" % n)
    e("s_mov_b64 exec, -1")
    lab("L_skip%d" % n)
    e("s_barrier")

def gather(ph, npart):
    lbl[0] += 1; n = lbl[0]
    e("s_mov_b32 s%d, 0" % sCNT)
    lab("L_g%d" % n)
    cur_off[0] = None
    ids = []
    for i in range(npart // 2):
        off = ph * 65536 + i * 4096
        so = soff(off)
        ids.append(vmem("buffer_load_dwordx4 %s, %s, %s, %s offen sc1" % (v(POOL + 4 * i, 4), v(vPLD), srd(sWS), so)))
    for i in range(npart // 2):
        vwait(ids[i])
        q = POOL + 4 * i
        if i == 0: e("v_max3_u32 %s, %s, %s, %s" % (v(vT), v(q), v(q + 1), v(q + 2))); e("v_max_u32 %s, %s, %s" % (v(vT), v(vT), v(q + 3)))
        else:
            e("v_max3_u32 %s, %s, %s, %s" % (v(vT), v(vT), v(q), v(q + 1))); e("v_max3_u32 %s, %s, %s, %s" % (v(vT), v(vT), v(q + 2), v(q + 3)))
            for k in range(4): e("v_add_f32 %s, %s, %s" % (v(POOL + k), v(POOL + k), v(q + k)))
    e("v_cmp_eq_u32 vcc, -1, %s" % v(vT))
    e("s_add_u32 s%d, s%d, 1" % (sCNT, sCNT))
    e("s_nop 3")
    e("s_cbranch_vccz L_gd%d" % n)
    e("s_cmp_ge_u32 s%d, 0x%x" % (sCNT, SPIN)); e("s_cbranch_scc1 L_gd%d" % n)
    e("s_sleep 2"); e("s_branch L_g%d" % n)
    lab("L_gd%d" % n)
    stamp(3)
    t = POOL + 4
    for k in range(4): e("v_mov_b32 %s, %s" % (v(t + k), v(POOL + k)))
    nop(2)
    for k in range(4): e("v_permlane32_swap_b32 %s, %s" % (v(POOL + k), v(t + k)))
    nop(1)
    for k in range(4): e("v_add_f32 %s, %s, %s" % (v(POOL + k), v(POOL + k), v(t + k)))
    round_bf16_pair(POOL, POOL + 1, t); round_bf16_pair(POOL + 2, POOL + 3, t)
    for k in range(4): e("v_add_f32 %s, %s, %s" % (v(vX + k), v(vX + k), v(POOL + k)))
    round_bf16_pair(vX, vX + 1, t); round_bf16_pair(vX + 2, vX + 3, t)
rst_ids = []
def reset_slots():
    for k in range(4): e("v_mov_b32 %s, -1" % v(SC + 8 + k))
    e("v_add_u32 %s, s%d, %s" % (v(vT), sT2, v(vPST)))
    for ph in range(4):
        rst_ids.append(vmem("buffer_store_dwordx4 %s, %s, %s, %s offen sc1" % (v(SC + 8, 4), v(vT), srd(sWS), soff(65536 * ph))))
def signal_reset():
    lbl[0] += 1; n = lbl[0]
    e("s_cmp_lg_u32 s%d, 0" % sW); e("s_cbranch_scc1 L_sr%d" % n)
    e("s_mov_b64 exec, 1")
    e("v_mov_b32 %s, s%d" % (v(ST), sB)); e("v_lshlrev_b32 %s, 2, %s" % (v(ST), v(ST)))
    e("v_mov_b32 %s, 1" % v(ST + 1))
    e("buffer_atomic_add %s, %s, %s, 0 offen" % (v(ST + 1), v(ST), srd(sDBG)))
    e("s_nop 1")
    e("s_mov_b64 exec, -1")
    lab("L_sr%d" % n)
def x_to_lds():
    e("ds_write_b128 %s, %s offset:%d" % (v(vXW), v(vX, 4), X1 - MISC))
    barrier()

e("s_cmp_ge_u32 s2, 256"); e("s_cbranch_scc1 L_end")
stamp(0)
e("s_load_dwordx16 s[64:79], s[0:1], 0")
e("s_load_dwordx4 s[80:83], s[0:1], 64")
e("s_load_dwordx2 s[84:85], s[0:1], 80")
e("v_lshrrev_b32 %s, 6, v0" % v(vT)); nop(1)
e("v_readfirstlane_b32 s%d, %s" % (sW, v(vT)))
e("v_and_b32 %s, 63, v0" % v(vL))
e("s_and_b32 s%d, s2, 31" % sH); e("s_lshr_b32 s%d, s2, 5" % sB)
e("s_waitcnt lgkmcnt(0)")
stamp(2)
def mk(srdr, pair, off_s, shift, size, mul=None):
    if mul is None:
        e("s_lshl_b32 s%d, s%d, %d" % (sT0, off_s, shift))
        e("s_lshr_b32 s%d, s%d, %d" % (sT1, off_s, 32 - shift))
        e("s_add_u32 s%d, s%d, s%d" % (srdr, pair, sT0)); e("s_addc_u32 s%d, s%d, s%d" % (srdr + 1, pair + 1, sT1))
    e("s_mov_b32 s%d, 0x%x" % (srdr + 2, size)); e("s_mov_b32 s%d, 0x20000" % (srdr + 3))
mk(sK, 66, 2, 20, 1 << 20); mk(sV, 68, 2, 20, 1 << 20)
mk(sX, 64, sB, 10, 1024); mk(sOUT, 80, sB, 10, 1024)
mk(sWS, 84, sB, 18, 1 << 18)
mk(sWQ, 70, sH, 8, 0); e("s_sub_u32 s%d, 0x400000, s%d" % (sWQ + 2, sT0))
mk(sWO, 72, sH, 17, 1 << 17)
e("s_min_u32 s%d, s%d, 13" % (sT2, sH))
mk(sW1, 76, sT2, 8, 0); e("s_sub_u32 s%d, 0x%x, s%d" % (sW1 + 2, 512 * 3584, sT0))
mk(sW2, 78, sT2, 17, 1 << 17)
e("s_cmp_lt_u32 s%d, 14" % sH)
e("s_cselect_b32 s%d, s%d, 0" % (sW1 + 2, sW1 + 2)); e("s_cselect_b32 s%d, s%d, 0" % (sW2 + 2, sW2 + 2))
e("s_mov_b32 s%d, s82" % sDBG); e("s_mov_b32 s%d, s83" % (sDBG + 1)); e("s_mov_b32 s%d, 256" % (sDBG + 2)); e("s_mov_b32 s%d, 0x20000" % (sDBG + 3))
e("s_lshl_b32 s%d, s%d, 11" % (sT2, sH))
e("s_mul_i32 s%d, s%d, %d" % (sLB, sW, LW))
for m, val in ((60, 0x11111111), (sM1, 0x22222222), (sM2, 0x44444444), (sM3, 0x88888888)):
    e("s_mov_b32 s%d, 0x%x" % (m, val)); e("s_mov_b32 s%d, 0x%x" % (m + 1, val))
c, g, w_, t3, t4 = ST, ST + 1, ST + 2, ST + 3, ST + 4
e("v_and_b32 %s, 15, %s" % (v(c), v(vL))); e("v_lshrrev_b32 %s, 4, %s" % (v(g), v(vL)))
e("v_mov_b32 %s, s%d" % (v(w_), sW))
e("v_and_b32 %s, 31, %s" % (v(t3), v(vL)))
e("v_lshlrev_b32 %s, 3, %s" % (v(t4), v(t3))); e("v_lshl_add_u32 %s, %s, 8, %s" % (v(ST + 5), v(w_), v(t4)))
xid = vmem("buffer_load_dwordx2 %s, %s, %s, 0 offen" % (v(vX, 2), v(ST + 5), srd(sX)))
e("v_lshlrev_b32 %s, 5, %s" % (v(vPST), v(c))); e("v_lshl_add_u32 %s, %s, 4, %s" % (v(vPST), v(g), v(vPST)))
e("v_lshl_add_u32 %s, %s, 9, %s" % (v(vPST), v(w_), v(vPST)))
e("v_add_u32 %s, 0x%x, %s" % (v(vRW), MISC, v(vPST)))
e("v_mov_b32 %s, 0x80000000" % v(vT)); e("v_cmp_gt_u32 vcc, 32, %s" % v(vL)); nop(2)
e("v_cndmask_b32 %s, %s, %s, vcc" % (v(vPST), v(vT), v(vPST)))
reset_slots()
e("v_lshl_add_u32 %s, %s, 7, %s" % (v(t4), v(w_), v(g)))
e("v_lshlrev_b32 %s, 4, %s" % (v(ST + 6), v(c)))
e("v_lshl_add_u32 %s, %s, 13, %s" % (v(vWQ), v(t4), v(ST + 6)))
e("v_lshrrev_b32 %s, 2, %s" % (v(vK), v(c))); e("v_lshlrev_b32 %s, 8, %s" % (v(vK), v(vK)))
e("v_and_b32 %s, 3, %s" % (v(vT), v(c))); e("v_lshl_add_u32 %s, %s, 2, %s" % (v(vT), v(g), v(vT)))
e("v_lshl_add_u32 %s, %s, 4, %s" % (v(vK), v(vT), v(vK))); e("v_lshl_add_u32 %s, %s, 18, %s" % (v(vK), v(w_), v(vK)))
dq.extend(range(NL + NA + NV))
q_W("wq", 0); q_streamK(0); q_V(0); q_W("wo", 0); q_W("w1", 0); q_W("w2", 0)
q_W("wq", 1); q_streamK(1); q_V(1); q_W("wo", 1); q_W("w1", 1); q_W("w2", 1)
for t in range(NR):
    tag, vo, s_, off, pol = ringq.pop(0); sl = free_slots.pop(0)
    landed[tag] = (sl, load(v(RING + 4 * sl, 4), vo, s_, off, pol))
    if t < P["pre"]: issue_direct(999, 1)
e("v_lshlrev_b32 %s, 4, %s" % (v(vV), v(vL))); e("v_mov_b32 %s, %s" % (v(vLT), v(vV)))
e("v_lshl_add_u32 %s, %s, 18, %s" % (v(vV), v(w_), v(vV)))
e("v_add_u32 %s, s%d, %s" % (v(vLT), sLB, v(vLT)))
e("s_mov_b32 s%d, 3584" % sT0); e("v_mul_lo_u32 %s, %s, s%d" % (v(vW1), v(t4), sT0)); e("v_add_u32 %s, %s, %s" % (v(vW1), v(vW1), v(ST + 6)))
e("v_lshl_add_u32 %s, %s, 10, %s" % (v(vWO), v(g), v(ST + 6))); e("v_lshl_add_u32 %s, %s, 8, %s" % (v(vWO), v(w_), v(vWO)))
e("v_lshlrev_b32 %s, 4, %s" % (v(vXW), v(t3))); e("v_lshl_add_u32 %s, %s, 9, %s" % (v(vXW), v(w_), v(vXW)))
e("v_lshrrev_b32 %s, 5, %s" % (v(vT), v(vL))); e("v_lshl_add_u32 %s, %s, 11, %s" % (v(vPLD), v(vT), v(vXW)))
e("v_add_u32 %s, 0x%x, %s" % (v(vXW), MISC, v(vXW)))
e("v_lshlrev_b32 %s, 4, %s" % (v(vP2), v(c))); e("v_lshl_add_u32 %s, %s, 2, %s" % (v(vP2), v(g), v(vP2)))
e("v_add_u32 %s, 0x%x, %s" % (v(vP2), MISC, v(vP2))); e("v_lshl_add_u32 %s, %s, 9, %s" % (v(vP2X), v(w_), v(vP2)))
e("v_and_b32 %s, 3, %s" % (v(vT), v(c))); e("v_lshl_add_u32 %s, %s, 2, %s" % (v(vT), v(g), v(vT)))
e("v_lshlrev_b32 %s, 5, %s" % (v(vQ), v(vT))); e("v_add_u32 %s, 0x%x, %s" % (v(vQ), MISC, v(vQ)))
e("v_lshlrev_b32 %s, 5, %s" % (v(vLN), v(vL))); e("v_add_u32 %s, 0x%x, %s" % (v(vLN), MISC, v(vLN)))
for k in range(4):
    e("v_mov_b32 %s, 0" % v(vM + k))
    e("v_mov_b32 %s, 0xffff" % v(vT)); e("v_cmp_eq_u32 vcc, %d, %s" % (2 * k, v(c))); nop(2)
    e("v_cndmask_b32 %s, %s, %s, vcc" % (v(vM + k), v(vM + k), v(vT)))
    e("v_mov_b32 %s, 0xffff0000" % v(vT)); e("v_cmp_eq_u32 vcc, %d, %s" % (2 * k + 1, v(c))); nop(2)
    e("v_cndmask_b32 %s, %s, %s, vcc" % (v(vM + k), v(vM + k), v(vT)))
stamp(2)
vwait(xid)
stamp(2)
e("v_and_b32 %s, 0xffff0000, %s" % (v(vX + 3), v(vX + 1))); e("v_lshlrev_b32 %s, 16, %s" % (v(vX + 2), v(vX + 1)))
e("v_and_b32 %s, 0xffff0000, %s" % (v(vX + 1), v(vX))); e("v_lshlrev_b32 %s, 16, %s" % (v(vX), v(vX)))

def q_phase(layer):
    if layer == 0: vwait(rst_ids[-1])
    x_to_lds()
    if layer == 0: signal_reset()
    stamp(2); layernorm(); stamp(2)
    tiles = ring_tiles("wq", layer, 32, wp)
    def qhook(i):
        if layer == 0:
            if i == 32 - NR - 1: hold[0] = True
            issue_direct(NL + NA + NV, P["qissue"])
            if i == P["touch0"]: touch(["wo", "w1", "w2"], ST + 14, SC + 12)
    gemv(tiles, D0, hook=qhook); stamp(2)
    write_red(RQ, D0); barrier(); stamp(2); make_qB(); stamp(2)
def pvp(u): return (SC + (u >> 4), 4 * (u & 3) + ((u >> 2) & 3))

q_phase(0)
stamp()
for layer in range(2):
    e("; ---------------- layer %d attention ----------------" % layer)
    deep[0] = False
    qk_phase(layer)
    stamp()
    softmax()
    def vhook(i, layer=layer):
        if i == P["touch2"]: touch(["wo"], ST + 14, ST + 8)
        if i == P["touch3"]: touch(["w1", "w2", "wq"] if layer == 0 else ["w1", "w2"], ST + 14, ST + 8)
    gemv(ring_tiles("V", layer, 256, pvp), D1, hook=vhook)
    stamp()
    combine()
    deep[0] = True
    gemv(ring_tiles("wo", layer, 32, wp), D0, hold_tail=True)
    stamp()
    publish(2 * layer, D0, False)
    stamp()
    gather(2 * layer, 32)
    e("; ---------------- layer %d ffn ----------------" % layer)
    x_to_lds(); layernorm()
    gemv(ring_tiles("w1", layer, 32, wp), D0)
    write_red(RH, D0); barrier(); hidden()
    gemv(ring_tiles("w2", layer, 32, wp), D0, hold_tail=True)
    stamp()
    publish(2 * layer + 1, D0, layer == 1)
    if layer == 0: stamp()
    gather(2 * layer + 1, 14)
    if layer == 0: q_phase(1); stamp()
assert not ringq and not landed
e("v_cvt_pk_bf16_f32 %s, %s, %s" % (v(ST), v(vX), v(vX + 1)))
e("v_cvt_pk_bf16_f32 %s, %s, %s" % (v(ST + 1), v(vX + 2), v(vX + 3)))
e("v_subrev_u32 %s, 0x%x, %s" % (v(ST + 2), MISC, v(vXW)))
e("v_lshrrev_b32 %s, 1, %s" % (v(ST + 2), v(ST + 2)))
exec_lo()
vmem("buffer_store_dwordx2 %s, %s, %s, 0 offen" % (v(ST, 2), v(ST + 2), srd(sOUT)))
vwait_all()
lab("L_end")
if P["stamps"]:
    e("s_cmp_ge_u32 s2, 256"); e("s_cbranch_scc1 L_end2")
    stamp(0)
    e("s_add_u32 s%d, s84, 0x400000" % sWS); e("s_addc_u32 s%d, s85, 0" % (sWS + 1))
    e("s_lshl_b32 s54, s2, 2"); e("s_add_u32 s54, s54, s44"); e("s_lshl_b32 s54, s54, 6")
    e("s_mov_b64 exec, 1")
    for k in range(nst[0]):
        e("v_mov_b32 v1, s%d" % (86 + k)); e("v_mov_b32 v2, s54")
        e("buffer_store_dword v1, v2, %s, 0 offen offset:%d" % (srd(sWS), 4 * k)); e("s_waitcnt vmcnt(0)")
    lab("L_end2")
e("s_endpgm")

hdr = """; Persistent 2-layer decode step: one workgroup per (batch, head); K tiles kept on chip between the layers.
; @launch grid=(256,1,1) block=(256,1,1) lds=%d
.amdgcn_target "amdgcn-amd-amdhsa--gfx950"
.text
.globl %s
.p2align 8
.type %s,@function
%s:
""" % (LDS_BYTES, KN, KN, KN)
ftr = """
.section .rodata,"a"
.p2align 6
.amdhsa_kernel %s
  .amdhsa_next_free_vgpr 512
  .amdhsa_next_free_sgpr 102
  .amdhsa_accum_offset 256
  .amdhsa_group_segment_fixed_size 0
  .amdhsa_kernarg_size 88
  .amdhsa_user_sgpr_count 2
  .amdhsa_user_sgpr_kernarg_segment_ptr 1
  .amdhsa_system_sgpr_workgroup_id_x 1
.end_amdhsa_kernel
""" % KN
open(sys.argv[1], "w").write(hdr + "\n".join(l.strip() if not l.endswith(":") else l for l in out) + ftr)
print("lines", len(out), "NV", NV, "NS", NS, "RET", RET, "LDS", LDS_BYTES)
```

```python
import sys
KN = "interleave_layers__mha_block_cached__dense_activation_silu__decode_kernel"
P = dict(NR=8, NL=36, WIN=8, polK="nt", polV="nt", polK2="nt", polV2="nt", sleep=1, interleave=1, stamps=0, touch1=12, touch2=200, touch3=200, qissue=1, pf=0, pfirst="K", pfw=4, km=2, kk=0, vm=2, vk=0, WS=8, polW="def", polT="def", pre=8, touch0=999)
for a in sys.argv[2:]:
    k, v = a.split("=")
    P[k] = int(v) if v.lstrip("-").isdigit() else v
NR, NL, WIN = P["NR"], P["NL"], P["WIN"]

out = []
def e(s): out.append("    " + s)
def lab(s): out.append(s + ":")
def nop(n): e("s_nop %d" % (n - 1))

sK, sV, sWQ, sWO, sW1, sW2, sWS, sDBG, sX, sOUT = 4, 8, 12, 16, 20, 24, 28, 32, 36, 40
sW, sOFF, sH, sB = 44, 45, 46, 47
sM1, sM2, sM3 = 48, 50, 52
sT0, sT1, sT2, sCNT, sLB = 54, 55, 56, 57, 58
def srd(r): return "s[%d:%d]" % (r, r + 3)
vL, vK, vV, vWQ, vW1, vWO, vPST, vPLD, vLT, vP2, vP2X, vRW, vXW, vQ, vLN, vT = range(16)
vM = 16; vX = 20
RING = 24
POOL = RING + 4 * NR
QB = POOL; SC = POOL + 16; D0 = POOL + 32; D1 = POOL + 36; A0 = POOL + 40; A1 = POOL + 44; ST = POOL + 48
RET = POOL + 64
NV = (256 - RET) // 4
NA = 64
NS = 256 - NL - NA - NV
def v(r, n=1): return "v%d" % r if n == 1 else "v[%d:%d]" % (r, r + n - 1)
def a(r, n=4): return "a[%d:%d]" % (r, r + n - 1)
LW = NL * 1024
MISC = 4 * LW
X1, RQ, RO, RH, ML, FLG = MISC, MISC + 2048, MISC + 4096, MISC + 6144, MISC + 8192, MISC + 8256
LDS_BYTES = MISC + 8320
assert LDS_BYTES <= 163840
CEXP = 1.4426950408889634 / (128 ** 0.5)
import struct
def f2u(x): return struct.unpack("<I", struct.pack("<f", x))[0]

vm = []; vmid = [0]
def vmem(s):
    e(s); vmid[0] += 1; vm.append(vmid[0]); return vmid[0]
def vwait(i):
    if i in vm:
        k = vm.index(i); n = len(vm) - 1 - k
        e("s_waitcnt vmcnt(%d)" % min(n, 63))
        del vm[:k + 1]
def vwait_all():
    e("s_waitcnt vmcnt(0)"); vm.clear()
cur_off = [None]
def soff(x):
    if x == 0: return "0"
    if cur_off[0] != x:
        e("s_mov_b32 s%d, 0x%x" % (sOFF, x)); cur_off[0] = x
    return "s%d" % sOFF
def load(dst, vo, s, off, pol=""):
    so = soff(off & ~4095)
    return vmem("buffer_load_dwordx4 %s, %s, %s, %s offen offset:%d %s" % (dst, v(vo), srd(s), so, off & 4095, pol if pol != "def" else ""))
def load_lds(tile, pol):
    off = tile * 1024
    so = soff(off & ~4095)
    if tile % 4 == 0 or True:
        e("s_add_u32 m0, s%d, 0x%x" % (sLB, off & ~4095)); nop(1)
    return vmem("buffer_load_dwordx4 %s, %s, %s offen offset:%d %s lds" % (v(vK), srd(sK), so, off & 4095, pol if pol != "def" else ""))

nst = [0]
def stamp(lvl=1):
    if P["stamps"] != lvl and not (lvl == 0 and P["stamps"]): return
    if nst[0] >= 16: return
    e("s_memrealtime s[62:63]"); e("s_waitcnt lgkmcnt(0)"); e("s_mov_b32 s%d, s62" % (86 + nst[0])); nst[0] += 1
ringq = []
free_slots = list(range(NR))
landed = {}
hold = [False]
deep = [False]
def pump():
    while ringq and free_slots and not hold[0]:
        if ringq[0][0][0] in ("K", "V") and not deep[0] and len(landed) >= P["WS"]: break
        tag, vo, s, off, pol = ringq.pop(0)
        sl = free_slots.pop(0)
        landed[tag] = (sl, load(v(RING + 4 * sl, 4), vo, s, off, pol))
def ring_get(tag):
    if tag not in landed:
        assert not hold[0]; pump()
    sl, i = landed[tag]; vwait(i); return v(RING + 4 * sl, 4)
def ring_done(tag):
    sl, _ = landed.pop(tag); free_slots.append(sl); pump()

def ksrc(u):
    if u < NL: return ("L", u)
    if u < NL + NA: return ("R", a(4 * (u - NL)))
    if u < NL + NA + NV: return ("R", v(RET + 4 * (u - NL - NA), 4))
    return ("S", None)
def q_streamK(layer):
    for u in range(NL + NA + NV, 256):
        ringq.append((("K", layer, u), vK, sK, u * 1024, (("def" if u % P["km"] < P["kk"] else P["polK"]) if layer == 0 else P["polK2"])))
def q_V(layer):
    for u in range(256):
        ringq.append((("V", layer, u), vV, sV, u * 1024, (("def" if u % P["vm"] < P["vk"] else P["polV"]) if layer == 0 else P["polV2"])))
def q_W(name, layer):
    vo, s, stride = {"wo": (vWO, sWO, 4096), "w2": (vWO, sW2, 4096), "wq": (vWQ, sWQ, 4 * 8192), "w1": (vW1, sW1, 4 * 3584)}[name]
    for t in range(32):
        ringq.append(((name, layer, t), vo, s, t * stride, P["polW"]))

DPP = "row_mask:0xf bank_mask:0xf"
def allreduce(op, x, t):
    for r in (8, 4, 2, 1):
        nop(2); e("%s_dpp %s, %s, %s row_ror:%d %s" % (op, v(x), v(x), v(x), r, DPP))
    for sw in ("v_permlane16_swap_b32", "v_permlane32_swap_b32"):
        e("v_mov_b32 %s, %s" % (v(t), v(x))); nop(2)
        e("%s %s, %s" % (sw, v(x), v(t))); nop(1)
        e("%s %s, %s, %s" % (op, v(x), v(x), v(t)))
def barrier():
    e("s_waitcnt lgkmcnt(0)"); e("s_barrier")
def exec_lo(): e("s_mov_b32 exec_hi, 0")
def exec_all(): e("s_mov_b32 exec_hi, -1")
def buildA(dst, p, j):
    for k in range(4):
        e("v_and_b32_dpp %s, %s, %s row_newbcast:%d %s" % (v(dst + k), v(p), v(vM + k), j, DPP))
def gemv(tiles, acc, hold_tail=False, hook=None):
    n = len(tiles)
    buildA(A0, tiles[0][2], tiles[0][3])
    for i, (get, done, p, j) in enumerate(tiles):
        if hold_tail and i == n - NR: hold[0] = True
        cur = A0 if i % 2 == 0 else A1
        nxt = A1 if i % 2 == 0 else A0
        if i + 1 < n: buildA(nxt, tiles[i + 1][2], tiles[i + 1][3])
        else: nop(2)
        b = get()
        e("v_mfma_f32_16x16x32_bf16 %s, %s, %s, %s" % (v(acc, 4), v(cur, 4), b, "0" if i == 0 else v(acc, 4)))
        done()
        if hook: hook(i)
    nop(8)
def ring_tiles(name, layer, n, pfn):
    r = []
    for t in range(n):
        tag = (name, layer, t); p, j = pfn(t)
        r.append((lambda tag=tag: ring_get(tag), lambda tag=tag: ring_done(tag), p, j))
    return r
def round_bf16_pair(x, y, t):
    e("v_cvt_pk_bf16_f32 %s, %s, %s" % (v(t), v(x), v(y)))
    e("v_lshlrev_b32 %s, 16, %s" % (v(x), v(t)))
    e("v_and_b32 %s, 0xffff0000, %s" % (v(y), v(t)))

def layernorm():
    t = ST
    e("ds_read_b128 %s, %s offset:%d" % (v(t, 4), v(vLN), X1 - MISC))
    e("ds_read_b128 %s, %s offset:%d" % (v(t + 4, 4), v(vLN), X1 - MISC + 16))
    e("ds_read_b32 %s, %s offset:%d" % (v(t + 12), v(vP2X), X1 - MISC))
    e("ds_read_b32 %s, %s offset:%d" % (v(t + 13), v(vP2X), X1 - MISC + 256))
    e("s_waitcnt lgkmcnt(2)")
    s = t + 8
    e("v_add_f32 %s, %s, %s" % (v(s), v(t), v(t + 1)))
    for k in range(2, 8): e("v_add_f32 %s, %s, %s" % (v(s), v(s), v(t + k)))
    allreduce("v_add_f32", s, t + 9)
    e("v_mul_f32 %s, 0x%x, %s" % (v(s), f2u(1.0 / 512), v(s)))
    for k in range(8): e("v_sub_f32 %s, %s, %s" % (v(t + k), v(t + k), v(s)))
    q = t + 10
    e("v_mul_f32 %s, %s, %s" % (v(q), v(t), v(t)))
    for k in range(1, 8): e("v_fmac_f32 %s, %s, %s" % (v(q), v(t + k), v(t + k)))
    allreduce("v_add_f32", q, t + 9)
    e("v_mov_b32 %s, 0x%x" % (v(t + 9), f2u(1e-5)))
    e("v_fmac_f32 %s, 0x%x, %s" % (v(t + 9), f2u(1.0 / 512), v(q)))
    e("v_rsq_f32 %s, %s" % (v(q), v(t + 9)))
    e("s_waitcnt lgkmcnt(0)")
    for k in range(2):
        e("v_sub_f32 %s, %s, %s" % (v(t + 12 + k), v(t + 12 + k), v(s)))
        e("v_mul_f32 %s, %s, %s" % (v(t + 12 + k), v(t + 12 + k), v(q)))
        e("v_cvt_pk_bf16_f32 %s, %s, %s" % (v(SC + k), v(t + 12 + k), v(t + 12 + k)))
    nop(2)
def write_red(area, acc):
    exec_lo()
    e("ds_write_b128 %s, %s offset:%d" % (v(vRW), v(acc, 4), area - MISC))
    exec_all()
def wp(t): return (SC + (t >> 4), t & 15)

def make_qB():
    t = ST
    for w in range(4):
        d = t if w == 0 else t + 8
        e("ds_read_b128 %s, %s offset:%d" % (v(d, 4), v(vQ), RQ - MISC + w * 512))
        e("ds_read_b128 %s, %s offset:%d" % (v(d + 4, 4), v(vQ), RQ - MISC + w * 512 + 16))
        if w > 0:
            e("s_waitcnt lgkmcnt(0)")
            for k in range(8): e("v_add_f32 %s, %s, %s" % (v(t + k), v(t + k), v(t + 8 + k)))
    for k in range(4):
        e("v_cvt_pk_bf16_f32 %s, %s, %s" % (v(t + 8 + k), v(t + 2 * k), v(t + 2 * k + 1)))
    e("v_lshrrev_b32 %s, 2, %s" % (v(t), v(vL)))
    e("v_and_b32 %s, 3, %s" % (v(t), v(t)))
    for tt in range(4):
        e("v_cmp_eq_u32 vcc, %d, %s" % (tt, v(t))); nop(2)
        for k in range(4): e("v_cndmask_b32 %s, 0, %s, vcc" % (v(QB + 4 * tt + k), v(t + 8 + k)))
    nop(2)

dq = []; did = {}
def issue_direct(upto, n=999):
    while dq and dq[0] <= upto and n > 0:
        u = dq.pop(0); k, r = ksrc(u); n -= 1
        did[u] = load_lds(u, P["polK"]) if k == "L" else load(r, vK, sK, u * 1024, P["polK"])
def touch(names, areg, dreg):
    for nm in names:
        e("s_lshl_b32 s%d, s%d, 2" % (sT0, sB)); e("s_add_u32 s%d, s%d, s%d" % (sT0, sT0, sW))
        sr = srd({"wo": sWO, "w2": sW2, "w1": sW1, "wq": sWQ}[nm])
        if nm in ("wo", "w2"):
            e("s_lshl_b32 s%d, s%d, 12" % (sT0, sT0))
            e("v_lshlrev_b32 %s, 4, %s" % (v(areg), v(vL)))
            for k in range(4):
                vmem("buffer_load_dwordx4 %s, %s, %s, s%d offen offset:%d %s" % (v(dreg, 4), v(areg), sr, sT0, 1024 * k, P["polT"].replace("def", "")))
        else:
            st = 8192 if nm == "wq" else 3584
            e("s_mul_i32 s%d, s%d, %d" % (sT0, sT0, 16 * st))
            e("v_lshrrev_b32 %s, 4, %s" % (v(areg), v(vL))); e("v_mul_u32_u24 %s, %d, %s" % (v(areg), st, v(areg)))
            e("v_and_b32 %s, 15, %s" % (v(vT), v(vL))); e("v_lshl_add_u32 %s, %s, 4, %s" % (v(areg), v(vT), v(areg)))
            for k in range(4):
                vmem("buffer_load_dwordx4 %s, %s, %s, s%d offen %s" % (v(dreg, 4), v(areg), sr, sT0, P["polT"].replace("def", "")))
                if k < 3: e("s_add_u32 s%d, s%d, %d" % (sT0, sT0, 4 * st))
def qk_phase(layer):
    groups = list(range(64))
    def srcs(gi): return [ksrc(4 * gi + t)[0] for t in range(4)]
    if layer == 1 and P["interleave"]:
        st = [g for g in groups if "S" in srcs(g)]; rt = [g for g in groups if "S" not in srcs(g)]
        order = []
        ns, nr_ = len(st), len(rt); ri = 0
        for k, g in enumerate(st):
            order.append(g)
            while ri * ns < (k + 1) * nr_: order.append(rt[ri]); ri += 1
        order += rt[ri:]
    else:
        order = groups
    if layer == 1: dq.clear()
    written = set()
    def reduce(gi, D):
        G, i = gi >> 2, gi & 3
        tmp = A0
        e("v_mov_b32_dpp %s, %s quad_perm:[0,0,0,0] %s" % (v(tmp), v(D), DPP))
        for k in (1, 2, 3):
            e("v_add_f32_dpp %s, %s, %s quad_perm:[%d,%d,%d,%d] %s" % (v(tmp), v(D + k), v(tmp), k, k, k, k, DPP))
        m = {0: 60, 1: sM1, 2: sM2, 3: sM3}[i]
        if G not in written:
            e("v_mov_b32 %s, %s" % (v(SC + G), v(tmp))); written.add(G)
        else:
            e("v_cndmask_b32 %s, %s, %s, s[%d:%d]" % (v(SC + G), v(SC + G), v(tmp), m, m + 1))
    prev = None
    staged = {}
    def stage(gi):
        for t in range(4):
            u = 4 * gi + t
            if ksrc(u)[0] == "L":
                if layer == 0: vwait(did[u])
                e("ds_read_b128 %s, %s offset:%d" % (v(ST + 4 * t, 4), v(vLT), u * 1024))
        staged[gi] = True
    for n, gi in enumerate(order):
        D = D0 if n % 2 == 0 else D1
        if "L" in srcs(gi) and gi not in staged: stage(gi)
        if "L" in srcs(gi): e("s_waitcnt lgkmcnt(0)")
        for t in range(4):
            u = 4 * gi + t; k, r = ksrc(u)
            if layer == 0:
                issue_direct(u + WIN)
                if not dq and hold[0]: hold[0] = False; pump()
            if k == "L": b = v(ST + 4 * t, 4)
            elif k == "R":
                if layer == 0: vwait(did[u])
                b = r
            else: b = ring_get(("K", layer, u))
            e("v_mfma_f32_16x16x32_bf16 %s, %s, %s, %s" % (v(D, 4), b, v(QB + 4 * t, 4), "0" if t == 0 else v(D, 4)))
            if k == "S": ring_done(("K", layer, u))
        if n + 1 < len(order) and "L" in srcs(order[n + 1]): stage(order[n + 1])
        if prev is not None:
            nop(4); reduce(*prev)
        pass
        prev = (gi, D)
    nop(8); reduce(*prev)

def softmax():
    m, t = D0, D0 + 1
    e("v_max3_f32 %s, %s, %s, %s" % (v(m), v(SC), v(SC + 1), v(SC + 2)))
    for k in range(3, 15, 2): e("v_max3_f32 %s, %s, %s, %s" % (v(m), v(m), v(SC + k), v(SC + k + 1)))
    e("v_max_f32 %s, %s, %s" % (v(m), v(m), v(SC + 15)))
    allreduce("v_max_f32", m, t)
    e("s_mov_b32 s%d, 0x%x" % (sT0, f2u(CEXP)))
    e("v_mul_f32 %s, s%d, %s" % (v(t), sT0, v(m)))
    for k in range(16): e("v_fma_f32 %s, %s, s%d, -%s" % (v(SC + k), v(SC + k), sT0, v(t)))
    for k in range(16): e("v_exp_f32 %s, %s" % (v(SC + k), v(SC + k)))
    l = D0 + 2
    nop(1)
    e("v_add_f32 %s, %s, %s" % (v(l), v(SC), v(SC + 1)))
    for k in range(2, 16): e("v_add_f32 %s, %s, %s" % (v(l), v(l), v(SC + k)))
    for k in range(16): e("v_cvt_pk_bf16_f32 %s, %s, %s" % (v(SC + k), v(SC + k), v(SC + k)))
    allreduce("v_add_f32", l, t)
    e("v_mul_f32 %s, s%d, %s" % (v(vT), sT0, v(m)))
    e("v_mov_b32 %s, %s" % (v(ST + 13), v(l)))
    e("v_mov_b32 %s, %s" % (v(ST + 12), v(vT)))
    nop(2)

def combine():
    write_red(RO, D1)
    e("v_mov_b32 %s, s%d" % (v(vT), sW)); e("v_lshlrev_b32 %s, 3, %s" % (v(vT), v(vT)))
    e("v_add_u32 %s, 0x%x, %s" % (v(vT), ML, v(vT)))
    e("ds_write_b64 %s, %s" % (v(vT), v(ST + 12, 2)))
    barrier()
    t = ST
    e("v_mov_b32 %s, 0x%x" % (v(vT), ML))
    e("ds_read_b128 %s, %s" % (v(t, 4), v(vT)))
    e("ds_read_b128 %s, %s offset:16" % (v(t + 4, 4), v(vT)))
    for w in range(4):
        for G in range(2):
            e("ds_read_b32 %s, %s offset:%d" % (v(QB + 2 * w + G), v(vP2), RO - MISC + w * 512 + G * 256))
    e("s_waitcnt lgkmcnt(8)")
    M = t + 8
    e("v_max3_f32 %s, %s, %s, %s" % (v(M), v(t), v(t + 2), v(t + 4)))
    e("v_max_f32 %s, %s, %s" % (v(M), v(M), v(t + 6)))
    for w in range(4): e("v_sub_f32 %s, %s, %s" % (v(t + 2 * w), v(t + 2 * w), v(M)))
    for w in range(4): e("v_exp_f32 %s, %s" % (v(t + 2 * w), v(t + 2 * w)))
    nop(1)
    e("v_mul_f32 %s, %s, %s" % (v(M), v(t), v(t + 1)))
    for w in range(1, 4): e("v_fmac_f32 %s, %s, %s" % (v(M), v(t + 2 * w), v(t + 2 * w + 1)))
    e("v_rcp_f32 %s, %s" % (v(M), v(M)))
    e("s_waitcnt lgkmcnt(0)")
    for G in range(2):
        e("v_mul_f32 %s, %s, %s" % (v(t + 10 + G), v(QB + G), v(t)))
        for w in range(1, 4): e("v_fmac_f32 %s, %s, %s" % (v(t + 10 + G), v(QB + 2 * w + G), v(t + 2 * w)))
        e("v_mul_f32 %s, %s, %s" % (v(t + 10 + G), v(t + 10 + G), v(M)))
        e("v_cvt_pk_bf16_f32 %s, %s, %s" % (v(SC + G), v(t + 10 + G), v(t + 10 + G)))
    nop(2)

def hidden():
    t = ST
    for w in range(4):
        for G in range(2):
            e("ds_read_b32 %s, %s offset:%d" % (v(t + 2 * w + G), v(vP2), RH - MISC + w * 512 + G * 256))
    e("s_waitcnt lgkmcnt(0)")
    for G in range(2):
        for w in range(1, 4): e("v_add_f32 %s, %s, %s" % (v(t + G), v(t + G), v(t + 2 * w + G)))
    round_bf16_pair(t, t + 1, t + 2)
    for G in range(2):
        e("v_mul_f32 %s, 0x%x, %s" % (v(t + 4 + G), f2u(-1.4426950408889634), v(t + G)))
    for G in range(2): e("v_exp_f32 %s, %s" % (v(t + 4 + G), v(t + 4 + G)))
    nop(1)
    for G in range(2): e("v_add_f32 %s, 1.0, %s" % (v(t + 4 + G), v(t + 4 + G)))
    for G in range(2): e("v_rcp_f32 %s, %s" % (v(t + 4 + G), v(t + 4 + G)))
    nop(1)
    for G in range(2):
        e("v_mul_f32 %s, %s, %s" % (v(t + G), v(t + G), v(t + 4 + G)))
        e("v_cvt_pk_bf16_f32 %s, %s, %s" % (v(SC + G), v(t + G), v(t + G)))
    nop(2)

lbl = [0]
SPIN = 0x40000
def publish(ph, acc, last):
    npart = 32 if ph % 2 == 0 else 14
    e("s_mov_b32 s%d, 0xfffffffe" % sT0)
    for k in range(4): e("v_min_u32 %s, s%d, %s" % (v(acc + k), sT0, v(acc + k)))
    so = soff(65536 * ph)
    e("v_add_u32 %s, s%d, %s" % (v(vT), sT2, v(vPST)))
    vmem("buffer_store_dwordx4 %s, %s, %s, %s offen sc1" % (v(acc, 4), v(vT), srd(sWS), so))
    if last:
        e("s_cmp_lg_u32 s%d, 31" % sH); e("s_cbranch_scc1 L_end")
    hold[0] = False; pump()
    lbl[0] += 1; n = lbl[0]
    stamp(3)
    pf = P["pf"] and ph < 2 and (ph == 0 or P["pf"] > 1)
    e("s_cmp_lg_u32 s%d, 0" % sW); e("s_cbranch_scc1 L_%s%d" % ("pf" if pf else "skip", n))
    e("s_mov_b32 s%d, 0" % sCNT)
    if ph == 0:
        e("v_mov_b32 %s, s%d" % (v(ST), sB)); e("v_lshlrev_b32 %s, 2, %s" % (v(ST), v(ST)))
        e("s_mov_b64 exec, 1")
        lab("L_rst%d" % n)
        e("buffer_load_dword %s, %s, %s, 0 offen sc1" % (v(ST + 2), v(ST), srd(sDBG)))
        e("s_waitcnt vmcnt(0)")
        e("v_readfirstlane_b32 s%d, %s" % (sT0, v(ST + 2)))
        e("s_add_u32 s%d, s%d, 1" % (sCNT, sCNT))
        e("s_cmp_ge_u32 s%d, 32" % sT0); e("s_cbranch_scc1 L_rstd%d" % n)
        e("s_cmp_ge_u32 s%d, 0x%x" % (sCNT, SPIN)); e("s_cbranch_scc1 L_rstd%d" % n)
        e("s_sleep 8"); e("s_branch L_rst%d" % n)
        lab("L_rstd%d" % n)
        e("s_mov_b64 exec, -1")
    e("v_lshlrev_b32 %s, 11, %s" % (v(ST), v(vL))); e("v_add_u32 %s, 0x%x, %s" % (v(ST), ph * 65536 + 2044, v(ST)))
    e("s_mov_b32 exec_lo, 0x%x" % ((1 << npart) - 1)); e("s_mov_b32 exec_hi, 0")
    lab("L_poll%d" % n)
    e("buffer_load_dword %s, %s, %s, 0 offen sc1" % (v(ST + 2), v(ST), srd(sWS)))
    e("s_waitcnt vmcnt(0)")
    e("v_cmp_eq_u32 vcc, -1, %s" % v(ST + 2))
    e("s_add_u32 s%d, s%d, 1" % (sCNT, sCNT))
    e("s_nop 3")
    e("s_and_b64 exec, exec, vcc"); e("s_cbranch_scc0 L_done%d" % n)
    e("s_cmp_ge_u32 s%d, 0x%x" % (sCNT, SPIN)); e("s_cbranch_scc1 L_done%d" % n)
    e("s_sleep %d" % P["sleep"]); e("s_branch L_poll%d" % n)
    lab("L_done%d" % n)
    e("s_mov_b64 exec, -1")
    if pf:
        e("v_mov_b32 %s, 0x%x" % (v(ST), FLG + 4 * ph)); e("v_mov_b32 %s, 1" % v(ST + 1))
        e("ds_write_b32 %s, %s" % (v(ST), v(ST + 1))); e("s_waitcnt lgkmcnt(0)")
        e("s_branch L_skip%d" % n)
        lab("L_pf%d" % n)
        isK = (ph == 0) == (P["pfirst"] == "K")
        km, kk = (P["km"], P["kk"]) if isK else (P["vm"], P["vk"])
        t0 = ((NL + NA + NV + km - 1) // km) * km if isK else 0
        per = km - kk
        nper = (256 - t0) // km
        sr = "s[72:75]" if isK else "s[76:79]"
        e("v_lshlrev_b32 %s, 4, %s" % (v(ST), v(vL))); e("v_mov_b32 %s, 0x%x" % (v(ST + 1), FLG + 4 * ph))
        e("s_sub_u32 s%d, s%d, 1" % (sCNT, sW))
        e("s_mov_b32 s59, s%d" % sH)
        lab("L_pfl%d" % n)
        e("ds_read_b32 %s, %s" % (v(ST + 2), v(ST + 1))); e("s_waitcnt lgkmcnt(0)")
        e("v_readfirstlane_b32 s%d, %s" % (sT0, v(ST + 2)))
        e("s_cmp_eq_u32 s%d, 1" % sT0); e("s_cbranch_scc1 L_skip%d" % n)
        e("s_cmp_ge_u32 s%d, %d" % (sCNT, nper * per)); e("s_cbranch_scc1 L_skip%d" % n)
        if per == 1: e("s_mul_i32 s%d, s%d, %d" % (sT0, sCNT, km)); e("s_add_u32 s%d, s%d, %d" % (sT0, sT0, t0 + kk))
        elif per == 2:
            e("s_lshr_b32 s%d, s%d, 1" % (sT0, sCNT)); e("s_mul_i32 s%d, s%d, %d" % (sT0, sT0, km))
            e("s_and_b32 s%d, s%d, 1" % (sT1, sCNT)); e("s_add_u32 s%d, s%d, s%d" % (sT0, sT0, sT1)); e("s_add_u32 s%d, s%d, %d" % (sT0, sT0, t0 + kk))
        else: assert False
        e("s_lshl_b32 s%d, s%d, 10" % (sT0, sT0))
        e("s_and_b32 s%d, s59, 31" % sT1); e("s_lshl_b32 s%d, s%d, 20" % (sT1, sT1)); e("s_add_u32 s%d, s%d, s%d" % (sT0, sT0, sT1))
        for w in range(4):
            e("buffer_load_dwordx4 %s, %s, %s, s%d offen" % (v(ST + 4, 4), v(ST), sr, sT0))
            if w < 3: e("s_add_u32 s%d, s%d, 0x40000" % (sT0, sT0))
        e("s_add_u32 s%d, s%d, 3" % (sCNT, sCNT)); e("s_add_u32 s59, s59, 1")
        e("s_waitcnt vmcnt(%d)" % P["pfw"])
        e("s_branch L_pfl%d" % n)
    lab("L_skip%d" % n)
    if pf: e("s_waitcnt vmcnt(0)")
    e("s_barrier")

def gather(ph, npart):
    lbl[0] += 1; n = lbl[0]
    e("s_mov_b32 s%d, 0" % sCNT)
    lab("L_g%d" % n)
    cur_off[0] = None
    ids = []
    for i in range(npart // 2):
        off = ph * 65536 + i * 4096
        so = soff(off)
        ids.append(vmem("buffer_load_dwordx4 %s, %s, %s, %s offen sc1" % (v(POOL + 4 * i, 4), v(vPLD), srd(sWS), so)))
    for i in range(npart // 2):
        vwait(ids[i])
        q = POOL + 4 * i
        if i == 0: e("v_max3_u32 %s, %s, %s, %s" % (v(vT), v(q), v(q + 1), v(q + 2))); e("v_max_u32 %s, %s, %s" % (v(vT), v(vT), v(q + 3)))
        else:
            e("v_max3_u32 %s, %s, %s, %s" % (v(vT), v(vT), v(q), v(q + 1))); e("v_max3_u32 %s, %s, %s, %s" % (v(vT), v(vT), v(q + 2), v(q + 3)))
            for k in range(4): e("v_add_f32 %s, %s, %s" % (v(POOL + k), v(POOL + k), v(q + k)))
    e("v_cmp_eq_u32 vcc, -1, %s" % v(vT))
    e("s_add_u32 s%d, s%d, 1" % (sCNT, sCNT))
    e("s_nop 3")
    e("s_cbranch_vccz L_gd%d" % n)
    e("s_cmp_ge_u32 s%d, 0x%x" % (sCNT, SPIN)); e("s_cbranch_scc1 L_gd%d" % n)
    e("s_sleep 2"); e("s_branch L_g%d" % n)
    lab("L_gd%d" % n)
    stamp(3)
    t = POOL + 4
    for k in range(4): e("v_mov_b32 %s, %s" % (v(t + k), v(POOL + k)))
    nop(2)
    for k in range(4): e("v_permlane32_swap_b32 %s, %s" % (v(POOL + k), v(t + k)))
    nop(1)
    for k in range(4): e("v_add_f32 %s, %s, %s" % (v(POOL + k), v(POOL + k), v(t + k)))
    round_bf16_pair(POOL, POOL + 1, t); round_bf16_pair(POOL + 2, POOL + 3, t)
    for k in range(4): e("v_add_f32 %s, %s, %s" % (v(vX + k), v(vX + k), v(POOL + k)))
    round_bf16_pair(vX, vX + 1, t); round_bf16_pair(vX + 2, vX + 3, t)
rst_ids = []
def reset_slots():
    for k in range(4): e("v_mov_b32 %s, -1" % v(SC + 8 + k))
    e("v_add_u32 %s, s%d, %s" % (v(vT), sT2, v(vPST)))
    for ph in range(4):
        rst_ids.append(vmem("buffer_store_dwordx4 %s, %s, %s, %s offen sc1" % (v(SC + 8, 4), v(vT), srd(sWS), soff(65536 * ph))))
def signal_reset():
    lbl[0] += 1; n = lbl[0]
    e("s_cmp_lg_u32 s%d, 0" % sW); e("s_cbranch_scc1 L_sr%d" % n)
    e("s_mov_b64 exec, 1")
    e("v_mov_b32 %s, s%d" % (v(ST), sB)); e("v_lshlrev_b32 %s, 2, %s" % (v(ST), v(ST)))
    e("v_mov_b32 %s, 1" % v(ST + 1))
    e("buffer_atomic_add %s, %s, %s, 0 offen" % (v(ST + 1), v(ST), srd(sDBG)))
    e("s_nop 1")
    e("s_mov_b64 exec, -1")
    lab("L_sr%d" % n)
def x_to_lds():
    e("ds_write_b128 %s, %s offset:%d" % (v(vXW), v(vX, 4), X1 - MISC))
    barrier()

e("s_cmp_ge_u32 s2, 256"); e("s_cbranch_scc1 L_end")
stamp(0)
e("s_load_dwordx16 s[64:79], s[0:1], 0")
e("s_load_dwordx4 s[80:83], s[0:1], 64")
e("s_load_dwordx2 s[84:85], s[0:1], 80")
e("v_lshrrev_b32 %s, 6, v0" % v(vT)); nop(1)
e("v_readfirstlane_b32 s%d, %s" % (sW, v(vT)))
e("v_and_b32 %s, 63, v0" % v(vL))
e("s_and_b32 s%d, s2, 31" % sH); e("s_lshr_b32 s%d, s2, 5" % sB)
e("s_waitcnt lgkmcnt(0)")
stamp(2)
def mk(srdr, pair, off_s, shift, size, mul=None):
    if mul is None:
        e("s_lshl_b32 s%d, s%d, %d" % (sT0, off_s, shift))
        e("s_lshr_b32 s%d, s%d, %d" % (sT1, off_s, 32 - shift))
        e("s_add_u32 s%d, s%d, s%d" % (srdr, pair, sT0)); e("s_addc_u32 s%d, s%d, s%d" % (srdr + 1, pair + 1, sT1))
    e("s_mov_b32 s%d, 0x%x" % (srdr + 2, size)); e("s_mov_b32 s%d, 0x20000" % (srdr + 3))
mk(sK, 66, 2, 20, 1 << 20); mk(sV, 68, 2, 20, 1 << 20)
mk(sX, 64, sB, 10, 1024); mk(sOUT, 80, sB, 10, 1024)
mk(sWS, 84, sB, 18, 1 << 18)
mk(sWQ, 70, sH, 8, 0); e("s_sub_u32 s%d, 0x400000, s%d" % (sWQ + 2, sT0))
mk(sWO, 72, sH, 17, 1 << 17)
e("s_min_u32 s%d, s%d, 13" % (sT2, sH))
mk(sW1, 76, sT2, 8, 0); e("s_sub_u32 s%d, 0x%x, s%d" % (sW1 + 2, 512 * 3584, sT0))
mk(sW2, 78, sT2, 17, 1 << 17)
e("s_cmp_lt_u32 s%d, 14" % sH)
e("s_cselect_b32 s%d, s%d, 0" % (sW1 + 2, sW1 + 2)); e("s_cselect_b32 s%d, s%d, 0" % (sW2 + 2, sW2 + 2))
e("s_mov_b32 s%d, s82" % sDBG); e("s_mov_b32 s%d, s83" % (sDBG + 1)); e("s_mov_b32 s%d, 256" % (sDBG + 2)); e("s_mov_b32 s%d, 0x20000" % (sDBG + 3))
e("s_lshl_b32 s%d, s%d, 11" % (sT2, sH))
e("s_lshl_b32 s%d, s%d, 25" % (sT0, sB)); e("s_lshr_b32 s%d, s%d, 7" % (sT1, sB))
e("s_add_u32 s72, s66, s%d" % sT0); e("s_addc_u32 s73, s67, s%d" % sT1); e("s_mov_b32 s74, 0x2000000"); e("s_mov_b32 s75, 0x20000")
e("s_add_u32 s76, s68, s%d" % sT0); e("s_addc_u32 s77, s69, s%d" % sT1); e("s_mov_b32 s78, 0x2000000"); e("s_mov_b32 s79, 0x20000")
e("s_mul_i32 s%d, s%d, %d" % (sLB, sW, LW))
for m, val in ((60, 0x11111111), (sM1, 0x22222222), (sM2, 0x44444444), (sM3, 0x88888888)):
    e("s_mov_b32 s%d, 0x%x" % (m, val)); e("s_mov_b32 s%d, 0x%x" % (m + 1, val))
c, g, w_, t3, t4 = ST, ST + 1, ST + 2, ST + 3, ST + 4
e("v_and_b32 %s, 15, %s" % (v(c), v(vL))); e("v_lshrrev_b32 %s, 4, %s" % (v(g), v(vL)))
e("v_mov_b32 %s, s%d" % (v(w_), sW))
e("v_and_b32 %s, 31, %s" % (v(t3), v(vL)))
e("v_lshlrev_b32 %s, 3, %s" % (v(t4), v(t3))); e("v_lshl_add_u32 %s, %s, 8, %s" % (v(ST + 5), v(w_), v(t4)))
xid = vmem("buffer_load_dwordx2 %s, %s, %s, 0 offen" % (v(vX, 2), v(ST + 5), srd(sX)))
e("v_lshlrev_b32 %s, 5, %s" % (v(vPST), v(c))); e("v_lshl_add_u32 %s, %s, 4, %s" % (v(vPST), v(g), v(vPST)))
e("v_lshl_add_u32 %s, %s, 9, %s" % (v(vPST), v(w_), v(vPST)))
e("v_add_u32 %s, 0x%x, %s" % (v(vRW), MISC, v(vPST)))
e("v_mov_b32 %s, 0x80000000" % v(vT)); e("v_cmp_gt_u32 vcc, 32, %s" % v(vL)); nop(2)
e("v_cndmask_b32 %s, %s, %s, vcc" % (v(vPST), v(vT), v(vPST)))
reset_slots()
e("v_lshl_add_u32 %s, %s, 7, %s" % (v(t4), v(w_), v(g)))
e("v_lshlrev_b32 %s, 4, %s" % (v(ST + 6), v(c)))
e("v_lshl_add_u32 %s, %s, 13, %s" % (v(vWQ), v(t4), v(ST + 6)))
e("v_lshrrev_b32 %s, 2, %s" % (v(vK), v(c))); e("v_lshlrev_b32 %s, 8, %s" % (v(vK), v(vK)))
e("v_and_b32 %s, 3, %s" % (v(vT), v(c))); e("v_lshl_add_u32 %s, %s, 2, %s" % (v(vT), v(g), v(vT)))
e("v_lshl_add_u32 %s, %s, 4, %s" % (v(vK), v(vT), v(vK))); e("v_lshl_add_u32 %s, %s, 18, %s" % (v(vK), v(w_), v(vK)))
dq.extend(range(NL + NA + NV))
q_W("wq", 0); q_streamK(0); q_V(0); q_W("wo", 0); q_W("w1", 0); q_W("w2", 0)
q_W("wq", 1); q_streamK(1); q_V(1); q_W("wo", 1); q_W("w1", 1); q_W("w2", 1)
for t in range(NR):
    tag, vo, s_, off, pol = ringq.pop(0); sl = free_slots.pop(0)
    landed[tag] = (sl, load(v(RING + 4 * sl, 4), vo, s_, off, pol))
    if t < P["pre"]: issue_direct(999, 1)
e("v_lshlrev_b32 %s, 4, %s" % (v(vV), v(vL))); e("v_mov_b32 %s, %s" % (v(vLT), v(vV)))
e("v_lshl_add_u32 %s, %s, 18, %s" % (v(vV), v(w_), v(vV)))
e("v_add_u32 %s, s%d, %s" % (v(vLT), sLB, v(vLT)))
e("s_mov_b32 s%d, 3584" % sT0); e("v_mul_lo_u32 %s, %s, s%d" % (v(vW1), v(t4), sT0)); e("v_add_u32 %s, %s, %s" % (v(vW1), v(vW1), v(ST + 6)))
e("v_lshl_add_u32 %s, %s, 10, %s" % (v(vWO), v(g), v(ST + 6))); e("v_lshl_add_u32 %s, %s, 8, %s" % (v(vWO), v(w_), v(vWO)))
e("v_lshlrev_b32 %s, 4, %s" % (v(vXW), v(t3))); e("v_lshl_add_u32 %s, %s, 9, %s" % (v(vXW), v(w_), v(vXW)))
e("v_lshrrev_b32 %s, 5, %s" % (v(vT), v(vL))); e("v_lshl_add_u32 %s, %s, 11, %s" % (v(vPLD), v(vT), v(vXW)))
e("v_add_u32 %s, 0x%x, %s" % (v(vXW), MISC, v(vXW)))
e("v_lshlrev_b32 %s, 4, %s" % (v(vP2), v(c))); e("v_lshl_add_u32 %s, %s, 2, %s" % (v(vP2), v(g), v(vP2)))
e("v_add_u32 %s, 0x%x, %s" % (v(vP2), MISC, v(vP2))); e("v_lshl_add_u32 %s, %s, 9, %s" % (v(vP2X), v(w_), v(vP2)))
e("v_and_b32 %s, 3, %s" % (v(vT), v(c))); e("v_lshl_add_u32 %s, %s, 2, %s" % (v(vT), v(g), v(vT)))
e("v_lshlrev_b32 %s, 5, %s" % (v(vQ), v(vT))); e("v_add_u32 %s, 0x%x, %s" % (v(vQ), MISC, v(vQ)))
e("v_lshlrev_b32 %s, 5, %s" % (v(vLN), v(vL))); e("v_add_u32 %s, 0x%x, %s" % (v(vLN), MISC, v(vLN)))
for k in range(4):
    e("v_mov_b32 %s, 0" % v(vM + k))
    e("v_mov_b32 %s, 0xffff" % v(vT)); e("v_cmp_eq_u32 vcc, %d, %s" % (2 * k, v(c))); nop(2)
    e("v_cndmask_b32 %s, %s, %s, vcc" % (v(vM + k), v(vM + k), v(vT)))
    e("v_mov_b32 %s, 0xffff0000" % v(vT)); e("v_cmp_eq_u32 vcc, %d, %s" % (2 * k + 1, v(c))); nop(2)
    e("v_cndmask_b32 %s, %s, %s, vcc" % (v(vM + k), v(vM + k), v(vT)))
e("v_mov_b32 %s, 0x%x" % (v(ST + 8), FLG)); e("v_mov_b32 %s, 0" % v(ST + 10)); e("v_mov_b32 %s, 0" % v(ST + 11))
e("ds_write_b64 %s, %s" % (v(ST + 8), v(ST + 10, 2)))
stamp(2)
vwait(xid)
stamp(2)
e("v_and_b32 %s, 0xffff0000, %s" % (v(vX + 3), v(vX + 1))); e("v_lshlrev_b32 %s, 16, %s" % (v(vX + 2), v(vX + 1)))
e("v_and_b32 %s, 0xffff0000, %s" % (v(vX + 1), v(vX))); e("v_lshlrev_b32 %s, 16, %s" % (v(vX), v(vX)))

def q_phase(layer):
    if layer == 0: vwait(rst_ids[-1])
    x_to_lds()
    if layer == 0: signal_reset()
    stamp(2); layernorm(); stamp(2)
    tiles = ring_tiles("wq", layer, 32, wp)
    def qhook(i):
        if layer == 0:
            if i == 32 - NR - 1: hold[0] = True
            issue_direct(NL + NA + NV, P["qissue"])
            if i == P["touch0"]: touch(["wo", "w1", "w2"], ST + 14, SC + 12)
    gemv(tiles, D0, hook=qhook); stamp(2)
    write_red(RQ, D0); barrier(); stamp(2); make_qB(); stamp(2)
def pvp(u): return (SC + (u >> 4), 4 * (u & 3) + ((u >> 2) & 3))

q_phase(0)
stamp()
for layer in range(2):
    e("; ---------------- layer %d attention ----------------" % layer)
    deep[0] = False
    qk_phase(layer)
    stamp()
    softmax()
    def vhook(i, layer=layer):
        if i == P["touch2"]: touch(["wo"], ST + 14, ST + 8)
        if i == P["touch3"]: touch(["w1", "w2", "wq"] if layer == 0 else ["w1", "w2"], ST + 14, ST + 8)
    gemv(ring_tiles("V", layer, 256, pvp), D1, hook=vhook)
    stamp()
    combine()
    deep[0] = True
    gemv(ring_tiles("wo", layer, 32, wp), D0, hold_tail=True)
    stamp()
    publish(2 * layer, D0, False)
    stamp()
    gather(2 * layer, 32)
    e("; ---------------- layer %d ffn ----------------" % layer)
    x_to_lds(); layernorm()
    gemv(ring_tiles("w1", layer, 32, wp), D0)
    write_red(RH, D0); barrier(); hidden()
    gemv(ring_tiles("w2", layer, 32, wp), D0, hold_tail=True)
    stamp()
    publish(2 * layer + 1, D0, layer == 1)
    if layer == 0: stamp()
    gather(2 * layer + 1, 14)
    if layer == 0: q_phase(1); stamp()
assert not ringq and not landed
e("v_cvt_pk_bf16_f32 %s, %s, %s" % (v(ST), v(vX), v(vX + 1)))
e("v_cvt_pk_bf16_f32 %s, %s, %s" % (v(ST + 1), v(vX + 2), v(vX + 3)))
e("v_subrev_u32 %s, 0x%x, %s" % (v(ST + 2), MISC, v(vXW)))
e("v_lshrrev_b32 %s, 1, %s" % (v(ST + 2), v(ST + 2)))
exec_lo()
vmem("buffer_store_dwordx2 %s, %s, %s, 0 offen" % (v(ST, 2), v(ST + 2), srd(sOUT)))
vwait_all()
lab("L_end")
if P["stamps"]:
    e("s_cmp_ge_u32 s2, 256"); e("s_cbranch_scc1 L_end2")
    stamp(0)
    e("s_add_u32 s%d, s84, 0x400000" % sWS); e("s_addc_u32 s%d, s85, 0" % (sWS + 1))
    e("s_lshl_b32 s54, s2, 2"); e("s_add_u32 s54, s54, s44"); e("s_lshl_b32 s54, s54, 6")
    e("s_mov_b64 exec, 1")
    for k in range(nst[0]):
        e("v_mov_b32 v1, s%d" % (86 + k)); e("v_mov_b32 v2, s54")
        e("buffer_store_dword v1, v2, %s, 0 offen offset:%d" % (srd(sWS), 4 * k)); e("s_waitcnt vmcnt(0)")
    lab("L_end2")
e("s_endpgm")

hdr = """; Persistent 2-layer decode step: one workgroup per (batch, head); K tiles kept on chip between the layers.
; @launch grid=(256,1,1) block=(256,1,1) lds=%d
.amdgcn_target "amdgcn-amd-amdhsa--gfx950"
.text
.globl %s
.p2align 8
.type %s,@function
%s:
""" % (LDS_BYTES, KN, KN, KN)
ftr = """
.section .rodata,"a"
.p2align 6
.amdhsa_kernel %s
  .amdhsa_next_free_vgpr 512
  .amdhsa_next_free_sgpr 102
  .amdhsa_accum_offset 256
  .amdhsa_group_segment_fixed_size 0
  .amdhsa_kernarg_size 88
  .amdhsa_user_sgpr_count 2
  .amdhsa_user_sgpr_kernarg_segment_ptr 1
  .amdhsa_system_sgpr_workgroup_id_x 1
.end_amdhsa_kernel
""" % KN
open(sys.argv[1], "w").write(hdr + "\n".join(l.strip() if not l.endswith(":") else l for l in out) + ftr)
print("lines", len(out), "NV", NV, "NS", NS, "RET", RET, "LDS", LDS_BYTES)
```

```python
import sys
KN = "interleave_layers__mha_block_cached__dense_activation_silu__decode_kernel"
P = dict(NR=8, NL=36, WIN=8, polK="nt", polV="nt", polK2="nt", polV2="nt", sleep=1, interleave=1, stamps=0, touch1=12, touch2=200, touch3=200, qissue=1, pf=0, pfirst="K", pfw=4, thr=0, thr2=0, gbit=2, t1a=8, t1b=160, t2a=122, t2b=280, km=2, kk=0, vm=2, vk=0, WS=8, polW="def", polT="def", pre=8, touch0=999)
for a in sys.argv[2:]:
    k, v = a.split("=")
    P[k] = int(v) if v.lstrip("-").isdigit() else v
NR, NL, WIN = P["NR"], P["NL"], P["WIN"]

out = []
def e(s): out.append("    " + s)
def lab(s): out.append(s + ":")
def nop(n): e("s_nop %d" % (n - 1))

sK, sV, sWQ, sWO, sW1, sW2, sWS, sDBG, sX, sOUT = 4, 8, 12, 16, 20, 24, 28, 32, 36, 40
sW, sOFF, sH, sB = 44, 45, 46, 47
sM1, sM2, sM3 = 48, 50, 52
sT0, sT1, sT2, sCNT, sLB = 54, 55, 56, 57, 58
def srd(r): return "s[%d:%d]" % (r, r + 3)
vL, vK, vV, vWQ, vW1, vWO, vPST, vPLD, vLT, vP2, vP2X, vRW, vXW, vQ, vLN, vT = range(16)
vM = 16; vX = 20
RING = 24
POOL = RING + 4 * NR
QB = POOL; SC = POOL + 16; D0 = POOL + 32; D1 = POOL + 36; A0 = POOL + 40; A1 = POOL + 44; ST = POOL + 48
RET = POOL + 64
NV = (256 - RET) // 4
NA = 64
NS = 256 - NL - NA - NV
def v(r, n=1): return "v%d" % r if n == 1 else "v[%d:%d]" % (r, r + n - 1)
def a(r, n=4): return "a[%d:%d]" % (r, r + n - 1)
LW = NL * 1024
MISC = 4 * LW
X1, RQ, RO, RH, ML, FLG = MISC, MISC + 2048, MISC + 4096, MISC + 6144, MISC + 8192, MISC + 8256
LDS_BYTES = MISC + 8320
assert LDS_BYTES <= 163840
CEXP = 1.4426950408889634 / (128 ** 0.5)
import struct
def f2u(x): return struct.unpack("<I", struct.pack("<f", x))[0]

vm = []; vmid = [0]
def vmem(s):
    e(s); vmid[0] += 1; vm.append(vmid[0]); return vmid[0]
def vwait(i):
    if i in vm:
        k = vm.index(i); n = len(vm) - 1 - k
        e("s_waitcnt vmcnt(%d)" % min(n, 63))
        del vm[:k + 1]
def vwait_all():
    e("s_waitcnt vmcnt(0)"); vm.clear()
cur_off = [None]
def soff(x):
    if x == 0: return "0"
    if cur_off[0] != x:
        e("s_mov_b32 s%d, 0x%x" % (sOFF, x)); cur_off[0] = x
    return "s%d" % sOFF
def load(dst, vo, s, off, pol=""):
    so = soff(off & ~4095)
    return vmem("buffer_load_dwordx4 %s, %s, %s, %s offen offset:%d %s" % (dst, v(vo), srd(s), so, off & 4095, pol if pol != "def" else ""))
def load_lds(tile, pol):
    off = tile * 1024
    so = soff(off & ~4095)
    if tile % 4 == 0 or True:
        e("s_add_u32 m0, s%d, 0x%x" % (sLB, off & ~4095)); nop(1)
    return vmem("buffer_load_dwordx4 %s, %s, %s offen offset:%d %s lds" % (v(vK), srd(sK), so, off & 4095, pol if pol != "def" else ""))

nst = [0]
def stamp(lvl=1):
    if P["stamps"] != lvl and not (lvl == 0 and P["stamps"]): return
    if nst[0] >= 16: return
    e("s_memrealtime s[62:63]"); e("s_waitcnt lgkmcnt(0)"); e("s_mov_b32 s%d, s62" % (86 + nst[0])); nst[0] += 1
ringq = []
free_slots = list(range(NR))
landed = {}
hold = [False]
deep = [False]
thn = [0]
def pump():
    while ringq and free_slots and not hold[0]:
        if ringq[0][0][0] in ("K", "V") and not deep[0] and len(landed) >= P["WS"]: break
        tag, vo, s, off, pol = ringq.pop(0)
        sl = free_slots.pop(0)
        if P["thr"] and tag[0] in ("K", "V"):
            n0 = NL + NA + NV
            idx = tag[2] - n0 if tag[0] == "K" else 256 - n0 + tag[2]
            lo_, hi_ = (P["t1a"], P["t1b"]) if tag[1] == 0 else (P["t2a"], P["t2b"])
            if lo_ <= idx < hi_:
                thn[0] += 1
                e("s_bitcmp1_b32 s%d, %d" % (sB, P["gbit"]))
                e("s_cbranch_scc%d L_th%d" % (0 if tag[1] == 0 else 1, thn[0]))
                e("s_waitcnt vmcnt(%d)" % (P["thr"] - 1))
                lab("L_th%d" % thn[0])
                if P["thr2"]: e("s_waitcnt vmcnt(%d)" % (P["thr2"] - 1))
        landed[tag] = (sl, load(v(RING + 4 * sl, 4), vo, s, off, pol))
def ring_get(tag):
    if tag not in landed:
        assert not hold[0]; pump()
    sl, i = landed[tag]; vwait(i); return v(RING + 4 * sl, 4)
def ring_done(tag):
    sl, _ = landed.pop(tag); free_slots.append(sl); pump()

def ksrc(u):
    if u < NL: return ("L", u)
    if u < NL + NA: return ("R", a(4 * (u - NL)))
    if u < NL + NA + NV: return ("R", v(RET + 4 * (u - NL - NA), 4))
    return ("S", None)
def q_streamK(layer):
    for u in range(NL + NA + NV, 256):
        ringq.append((("K", layer, u), vK, sK, u * 1024, (("def" if u % P["km"] < P["kk"] else P["polK"]) if layer == 0 else P["polK2"])))
def q_V(layer):
    for u in range(256):
        ringq.append((("V", layer, u), vV, sV, u * 1024, (("def" if u % P["vm"] < P["vk"] else P["polV"]) if layer == 0 else P["polV2"])))
def q_W(name, layer):
    vo, s, stride = {"wo": (vWO, sWO, 4096), "w2": (vWO, sW2, 4096), "wq": (vWQ, sWQ, 4 * 8192), "w1": (vW1, sW1, 4 * 3584)}[name]
    for t in range(32):
        ringq.append(((name, layer, t), vo, s, t * stride, P["polW"]))

DPP = "row_mask:0xf bank_mask:0xf"
def allreduce(op, x, t):
    for r in (8, 4, 2, 1):
        nop(2); e("%s_dpp %s, %s, %s row_ror:%d %s" % (op, v(x), v(x), v(x), r, DPP))
    for sw in ("v_permlane16_swap_b32", "v_permlane32_swap_b32"):
        e("v_mov_b32 %s, %s" % (v(t), v(x))); nop(2)
        e("%s %s, %s" % (sw, v(x), v(t))); nop(1)
        e("%s %s, %s, %s" % (op, v(x), v(x), v(t)))
def barrier():
    e("s_waitcnt lgkmcnt(0)"); e("s_barrier")
def exec_lo(): e("s_mov_b32 exec_hi, 0")
def exec_all(): e("s_mov_b32 exec_hi, -1")
def buildA(dst, p, j):
    for k in range(4):
        e("v_and_b32_dpp %s, %s, %s row_newbcast:%d %s" % (v(dst + k), v(p), v(vM + k), j, DPP))
def gemv(tiles, acc, hold_tail=False, hook=None):
    n = len(tiles)
    buildA(A0, tiles[0][2], tiles[0][3])
    for i, (get, done, p, j) in enumerate(tiles):
        if hold_tail and i == n - NR: hold[0] = True
        cur = A0 if i % 2 == 0 else A1
        nxt = A1 if i % 2 == 0 else A0
        if i + 1 < n: buildA(nxt, tiles[i + 1][2], tiles[i + 1][3])
        else: nop(2)
        b = get()
        e("v_mfma_f32_16x16x32_bf16 %s, %s, %s, %s" % (v(acc, 4), v(cur, 4), b, "0" if i == 0 else v(acc, 4)))
        done()
        if hook: hook(i)
    nop(8)
def ring_tiles(name, layer, n, pfn):
    r = []
    for t in range(n):
        tag = (name, layer, t); p, j = pfn(t)
        r.append((lambda tag=tag: ring_get(tag), lambda tag=tag: ring_done(tag), p, j))
    return r
def round_bf16_pair(x, y, t):
    e("v_cvt_pk_bf16_f32 %s, %s, %s" % (v(t), v(x), v(y)))
    e("v_lshlrev_b32 %s, 16, %s" % (v(x), v(t)))
    e("v_and_b32 %s, 0xffff0000, %s" % (v(y), v(t)))

def layernorm():
    t = ST
    e("ds_read_b128 %s, %s offset:%d" % (v(t, 4), v(vLN), X1 - MISC))
    e("ds_read_b128 %s, %s offset:%d" % (v(t + 4, 4), v(vLN), X1 - MISC + 16))
    e("ds_read_b32 %s, %s offset:%d" % (v(t + 12), v(vP2X), X1 - MISC))
    e("ds_read_b32 %s, %s offset:%d" % (v(t + 13), v(vP2X), X1 - MISC + 256))
    e("s_waitcnt lgkmcnt(2)")
    s = t + 8
    e("v_add_f32 %s, %s, %s" % (v(s), v(t), v(t + 1)))
    for k in range(2, 8): e("v_add_f32 %s, %s, %s" % (v(s), v(s), v(t + k)))
    allreduce("v_add_f32", s, t + 9)
    e("v_mul_f32 %s, 0x%x, %s" % (v(s), f2u(1.0 / 512), v(s)))
    for k in range(8): e("v_sub_f32 %s, %s, %s" % (v(t + k), v(t + k), v(s)))
    q = t + 10
    e("v_mul_f32 %s, %s, %s" % (v(q), v(t), v(t)))
    for k in range(1, 8): e("v_fmac_f32 %s, %s, %s" % (v(q), v(t + k), v(t + k)))
    allreduce("v_add_f32", q, t + 9)
    e("v_mov_b32 %s, 0x%x" % (v(t + 9), f2u(1e-5)))
    e("v_fmac_f32 %s, 0x%x, %s" % (v(t + 9), f2u(1.0 / 512), v(q)))
    e("v_rsq_f32 %s, %s" % (v(q), v(t + 9)))
    e("s_waitcnt lgkmcnt(0)")
    for k in range(2):
        e("v_sub_f32 %s, %s, %s" % (v(t + 12 + k), v(t + 12 + k), v(s)))
        e("v_mul_f32 %s, %s, %s" % (v(t + 12 + k), v(t + 12 + k), v(q)))
        e("v_cvt_pk_bf16_f32 %s, %s, %s" % (v(SC + k), v(t + 12 + k), v(t + 12 + k)))
    nop(2)
def write_red(area, acc):
    exec_lo()
    e("ds_write_b128 %s, %s offset:%d" % (v(vRW), v(acc, 4), area - MISC))
    exec_all()
def wp(t): return (SC + (t >> 4), t & 15)

def make_qB():
    t = ST
    for w in range(4):
        d = t if w == 0 else t + 8
        e("ds_read_b128 %s, %s offset:%d" % (v(d, 4), v(vQ), RQ - MISC + w * 512))
        e("ds_read_b128 %s, %s offset:%d" % (v(d + 4, 4), v(vQ), RQ - MISC + w * 512 + 16))
        if w > 0:
            e("s_waitcnt lgkmcnt(0)")
            for k in range(8): e("v_add_f32 %s, %s, %s" % (v(t + k), v(t + k), v(t + 8 + k)))
    for k in range(4):
        e("v_cvt_pk_bf16_f32 %s, %s, %s" % (v(t + 8 + k), v(t + 2 * k), v(t + 2 * k + 1)))
    e("v_lshrrev_b32 %s, 2, %s" % (v(t), v(vL)))
    e("v_and_b32 %s, 3, %s" % (v(t), v(t)))
    for tt in range(4):
        e("v_cmp_eq_u32 vcc, %d, %s" % (tt, v(t))); nop(2)
        for k in range(4): e("v_cndmask_b32 %s, 0, %s, vcc" % (v(QB + 4 * tt + k), v(t + 8 + k)))
    nop(2)

dq = []; did = {}
def issue_direct(upto, n=999):
    while dq and dq[0] <= upto and n > 0:
        u = dq.pop(0); k, r = ksrc(u); n -= 1
        did[u] = load_lds(u, P["polK"]) if k == "L" else load(r, vK, sK, u * 1024, P["polK"])
def touch(names, areg, dreg):
    for nm in names:
        e("s_lshl_b32 s%d, s%d, 2" % (sT0, sB)); e("s_add_u32 s%d, s%d, s%d" % (sT0, sT0, sW))
        sr = srd({"wo": sWO, "w2": sW2, "w1": sW1, "wq": sWQ}[nm])
        if nm in ("wo", "w2"):
            e("s_lshl_b32 s%d, s%d, 12" % (sT0, sT0))
            e("v_lshlrev_b32 %s, 4, %s" % (v(areg), v(vL)))
            for k in range(4):
                vmem("buffer_load_dwordx4 %s, %s, %s, s%d offen offset:%d %s" % (v(dreg, 4), v(areg), sr, sT0, 1024 * k, P["polT"].replace("def", "")))
        else:
            st = 8192 if nm == "wq" else 3584
            e("s_mul_i32 s%d, s%d, %d" % (sT0, sT0, 16 * st))
            e("v_lshrrev_b32 %s, 4, %s" % (v(areg), v(vL))); e("v_mul_u32_u24 %s, %d, %s" % (v(areg), st, v(areg)))
            e("v_and_b32 %s, 15, %s" % (v(vT), v(vL))); e("v_lshl_add_u32 %s, %s, 4, %s" % (v(areg), v(vT), v(areg)))
            for k in range(4):
                vmem("buffer_load_dwordx4 %s, %s, %s, s%d offen %s" % (v(dreg, 4), v(areg), sr, sT0, P["polT"].replace("def", "")))
                if k < 3: e("s_add_u32 s%d, s%d, %d" % (sT0, sT0, 4 * st))
def qk_phase(layer):
    groups = list(range(64))
    def srcs(gi): return [ksrc(4 * gi + t)[0] for t in range(4)]
    if layer == 1 and P["interleave"]:
        st = [g for g in groups if "S" in srcs(g)]; rt = [g for g in groups if "S" not in srcs(g)]
        order = []
        ns, nr_ = len(st), len(rt); ri = 0
        for k, g in enumerate(st):
            order.append(g)
            while ri * ns < (k + 1) * nr_: order.append(rt[ri]); ri += 1
        order += rt[ri:]
    else:
        order = groups
    if layer == 1: dq.clear()
    written = set()
    def reduce(gi, D):
        G, i = gi >> 2, gi & 3
        tmp = A0
        e("v_mov_b32_dpp %s, %s quad_perm:[0,0,0,0] %s" % (v(tmp), v(D), DPP))
        for k in (1, 2, 3):
            e("v_add_f32_dpp %s, %s, %s quad_perm:[%d,%d,%d,%d] %s" % (v(tmp), v(D + k), v(tmp), k, k, k, k, DPP))
        m = {0: 60, 1: sM1, 2: sM2, 3: sM3}[i]
        if G not in written:
            e("v_mov_b32 %s, %s" % (v(SC + G), v(tmp))); written.add(G)
        else:
            e("v_cndmask_b32 %s, %s, %s, s[%d:%d]" % (v(SC + G), v(SC + G), v(tmp), m, m + 1))
    prev = None
    staged = {}
    def stage(gi):
        for t in range(4):
            u = 4 * gi + t
            if ksrc(u)[0] == "L":
                if layer == 0: vwait(did[u])
                e("ds_read_b128 %s, %s offset:%d" % (v(ST + 4 * t, 4), v(vLT), u * 1024))
        staged[gi] = True
    for n, gi in enumerate(order):
        D = D0 if n % 2 == 0 else D1
        if "L" in srcs(gi) and gi not in staged: stage(gi)
        if "L" in srcs(gi): e("s_waitcnt lgkmcnt(0)")
        for t in range(4):
            u = 4 * gi + t; k, r = ksrc(u)
            if layer == 0:
                issue_direct(u + WIN)
                if not dq and hold[0]: hold[0] = False; pump()
            if k == "L": b = v(ST + 4 * t, 4)
            elif k == "R":
                if layer == 0: vwait(did[u])
                b = r
            else: b = ring_get(("K", layer, u))
            e("v_mfma_f32_16x16x32_bf16 %s, %s, %s, %s" % (v(D, 4), b, v(QB + 4 * t, 4), "0" if t == 0 else v(D, 4)))
            if k == "S": ring_done(("K", layer, u))
        if n + 1 < len(order) and "L" in srcs(order[n + 1]): stage(order[n + 1])
        if prev is not None:
            nop(4); reduce(*prev)
        pass
        prev = (gi, D)
    nop(8); reduce(*prev)

def softmax():
    m, t = D0, D0 + 1
    e("v_max3_f32 %s, %s, %s, %s" % (v(m), v(SC), v(SC + 1), v(SC + 2)))
    for k in range(3, 15, 2): e("v_max3_f32 %s, %s, %s, %s" % (v(m), v(m), v(SC + k), v(SC + k + 1)))
    e("v_max_f32 %s, %s, %s" % (v(m), v(m), v(SC + 15)))
    allreduce("v_max_f32", m, t)
    e("s_mov_b32 s%d, 0x%x" % (sT0, f2u(CEXP)))
    e("v_mul_f32 %s, s%d, %s" % (v(t), sT0, v(m)))
    for k in range(16): e("v_fma_f32 %s, %s, s%d, -%s" % (v(SC + k), v(SC + k), sT0, v(t)))
    for k in range(16): e("v_exp_f32 %s, %s" % (v(SC + k), v(SC + k)))
    l = D0 + 2
    nop(1)
    e("v_add_f32 %s, %s, %s" % (v(l), v(SC), v(SC + 1)))
    for k in range(2, 16): e("v_add_f32 %s, %s, %s" % (v(l), v(l), v(SC + k)))
    for k in range(16): e("v_cvt_pk_bf16_f32 %s, %s, %s" % (v(SC + k), v(SC + k), v(SC + k)))
    allreduce("v_add_f32", l, t)
    e("v_mul_f32 %s, s%d, %s" % (v(vT), sT0, v(m)))
    e("v_mov_b32 %s, %s" % (v(ST + 13), v(l)))
    e("v_mov_b32 %s, %s" % (v(ST + 12), v(vT)))
    nop(2)

def combine():
    write_red(RO, D1)
    e("v_mov_b32 %s, s%d" % (v(vT), sW)); e("v_lshlrev_b32 %s, 3, %s" % (v(vT), v(vT)))
    e("v_add_u32 %s, 0x%x, %s" % (v(vT), ML, v(vT)))
    e("ds_write_b64 %s, %s" % (v(vT), v(ST + 12, 2)))
    barrier()
    t = ST
    e("v_mov_b32 %s, 0x%x" % (v(vT), ML))
    e("ds_read_b128 %s, %s" % (v(t, 4), v(vT)))
    e("ds_read_b128 %s, %s offset:16" % (v(t + 4, 4), v(vT)))
    for w in range(4):
        for G in range(2):
            e("ds_read_b32 %s, %s offset:%d" % (v(QB + 2 * w + G), v(vP2), RO - MISC + w * 512 + G * 256))
    e("s_waitcnt lgkmcnt(8)")
    M = t + 8
    e("v_max3_f32 %s, %s, %s, %s" % (v(M), v(t), v(t + 2), v(t + 4)))
    e("v_max_f32 %s, %s, %s" % (v(M), v(M), v(t + 6)))
    for w in range(4): e("v_sub_f32 %s, %s, %s" % (v(t + 2 * w), v(t + 2 * w), v(M)))
    for w in range(4): e("v_exp_f32 %s, %s" % (v(t + 2 * w), v(t + 2 * w)))
    nop(1)
    e("v_mul_f32 %s, %s, %s" % (v(M), v(t), v(t + 1)))
    for w in range(1, 4): e("v_fmac_f32 %s, %s, %s" % (v(M), v(t + 2 * w), v(t + 2 * w + 1)))
    e("v_rcp_f32 %s, %s" % (v(M), v(M)))
    e("s_waitcnt lgkmcnt(0)")
    for G in range(2):
        e("v_mul_f32 %s, %s, %s" % (v(t + 10 + G), v(QB + G), v(t)))
        for w in range(1, 4): e("v_fmac_f32 %s, %s, %s" % (v(t + 10 + G), v(QB + 2 * w + G), v(t + 2 * w)))
        e("v_mul_f32 %s, %s, %s" % (v(t + 10 + G), v(t + 10 + G), v(M)))
        e("v_cvt_pk_bf16_f32 %s, %s, %s" % (v(SC + G), v(t + 10 + G), v(t + 10 + G)))
    nop(2)

def hidden():
    t = ST
    for w in range(4):
        for G in range(2):
            e("ds_read_b32 %s, %s offset:%d" % (v(t + 2 * w + G), v(vP2), RH - MISC + w * 512 + G * 256))
    e("s_waitcnt lgkmcnt(0)")
    for G in range(2):
        for w in range(1, 4): e("v_add_f32 %s, %s, %s" % (v(t + G), v(t + G), v(t + 2 * w + G)))
    round_bf16_pair(t, t + 1, t + 2)
    for G in range(2):
        e("v_mul_f32 %s, 0x%x, %s" % (v(t + 4 + G), f2u(-1.4426950408889634), v(t + G)))
    for G in range(2): e("v_exp_f32 %s, %s" % (v(t + 4 + G), v(t + 4 + G)))
    nop(1)
    for G in range(2): e("v_add_f32 %s, 1.0, %s" % (v(t + 4 + G), v(t + 4 + G)))
    for G in range(2): e("v_rcp_f32 %s, %s" % (v(t + 4 + G), v(t + 4 + G)))
    nop(1)
    for G in range(2):
        e("v_mul_f32 %s, %s, %s" % (v(t + G), v(t + G), v(t + 4 + G)))
        e("v_cvt_pk_bf16_f32 %s, %s, %s" % (v(SC + G), v(t + G), v(t + G)))
    nop(2)

lbl = [0]
SPIN = 0x40000
def publish(ph, acc, last):
    npart = 32 if ph % 2 == 0 else 14
    e("s_mov_b32 s%d, 0xfffffffe" % sT0)
    for k in range(4): e("v_min_u32 %s, s%d, %s" % (v(acc + k), sT0, v(acc + k)))
    so = soff(65536 * ph)
    e("v_add_u32 %s, s%d, %s" % (v(vT), sT2, v(vPST)))
    vmem("buffer_store_dwordx4 %s, %s, %s, %s offen sc1" % (v(acc, 4), v(vT), srd(sWS), so))
    if last:
        e("s_cmp_lg_u32 s%d, 31" % sH); e("s_cbranch_scc1 L_end")
    hold[0] = False; pump()
    lbl[0] += 1; n = lbl[0]
    stamp(3)
    pf = P["pf"] and ph < 2 and (ph == 0 or P["pf"] > 1)
    e("s_cmp_lg_u32 s%d, 0" % sW); e("s_cbranch_scc1 L_%s%d" % ("pf" if pf else "skip", n))
    e("s_mov_b32 s%d, 0" % sCNT)
    if ph == 0:
        e("v_mov_b32 %s, s%d" % (v(ST), sB)); e("v_lshlrev_b32 %s, 2, %s" % (v(ST), v(ST)))
        e("s_mov_b64 exec, 1")
        lab("L_rst%d" % n)
        e("buffer_load_dword %s, %s, %s, 0 offen sc1" % (v(ST + 2), v(ST), srd(sDBG)))
        e("s_waitcnt vmcnt(0)")
        e("v_readfirstlane_b32 s%d, %s" % (sT0, v(ST + 2)))
        e("s_add_u32 s%d, s%d, 1" % (sCNT, sCNT))
        e("s_cmp_ge_u32 s%d, 32" % sT0); e("s_cbranch_scc1 L_rstd%d" % n)
        e("s_cmp_ge_u32 s%d, 0x%x" % (sCNT, SPIN)); e("s_cbranch_scc1 L_rstd%d" % n)
        e("s_sleep 8"); e("s_branch L_rst%d" % n)
        lab("L_rstd%d" % n)
        e("s_mov_b64 exec, -1")
    e("v_lshlrev_b32 %s, 11, %s" % (v(ST), v(vL))); e("v_add_u32 %s, 0x%x, %s" % (v(ST), ph * 65536 + 2044, v(ST)))
    e("s_mov_b32 exec_lo, 0x%x" % ((1 << npart) - 1)); e("s_mov_b32 exec_hi, 0")
    lab("L_poll%d" % n)
    e("buffer_load_dword %s, %s, %s, 0 offen sc1" % (v(ST + 2), v(ST), srd(sWS)))
    e("s_waitcnt vmcnt(0)")
    e("v_cmp_eq_u32 vcc, -1, %s" % v(ST + 2))
    e("s_add_u32 s%d, s%d, 1" % (sCNT, sCNT))
    e("s_nop 3")
    e("s_and_b64 exec, exec, vcc"); e("s_cbranch_scc0 L_done%d" % n)
    e("s_cmp_ge_u32 s%d, 0x%x" % (sCNT, SPIN)); e("s_cbranch_scc1 L_done%d" % n)
    e("s_sleep %d" % P["sleep"]); e("s_branch L_poll%d" % n)
    lab("L_done%d" % n)
    e("s_mov_b64 exec, -1")
    if pf:
        e("v_mov_b32 %s, 0x%x" % (v(ST), FLG + 4 * ph)); e("v_mov_b32 %s, 1" % v(ST + 1))
        e("ds_write_b32 %s, %s" % (v(ST), v(ST + 1))); e("s_waitcnt lgkmcnt(0)")
        e("s_branch L_skip%d" % n)
        lab("L_pf%d" % n)
        isK = (ph == 0) == (P["pfirst"] == "K")
        km, kk = (P["km"], P["kk"]) if isK else (P["vm"], P["vk"])
        t0 = ((NL + NA + NV + km - 1) // km) * km if isK else 0
        per = km - kk
        nper = (256 - t0) // km
        sr = "s[72:75]" if isK else "s[76:79]"
        e("v_lshlrev_b32 %s, 4, %s" % (v(ST), v(vL))); e("v_mov_b32 %s, 0x%x" % (v(ST + 1), FLG + 4 * ph))
        e("s_sub_u32 s%d, s%d, 1" % (sCNT, sW))
        e("s_mov_b32 s59, s%d" % sH)
        lab("L_pfl%d" % n)
        e("ds_read_b32 %s, %s" % (v(ST + 2), v(ST + 1))); e("s_waitcnt lgkmcnt(0)")
        e("v_readfirstlane_b32 s%d, %s" % (sT0, v(ST + 2)))
        e("s_cmp_eq_u32 s%d, 1" % sT0); e("s_cbranch_scc1 L_skip%d" % n)
        e("s_cmp_ge_u32 s%d, %d" % (sCNT, nper * per)); e("s_cbranch_scc1 L_skip%d" % n)
        if per == 1: e("s_mul_i32 s%d, s%d, %d" % (sT0, sCNT, km)); e("s_add_u32 s%d, s%d, %d" % (sT0, sT0, t0 + kk))
        elif per == 2:
            e("s_lshr_b32 s%d, s%d, 1" % (sT0, sCNT)); e("s_mul_i32 s%d, s%d, %d" % (sT0, sT0, km))
            e("s_and_b32 s%d, s%d, 1" % (sT1, sCNT)); e("s_add_u32 s%d, s%d, s%d" % (sT0, sT0, sT1)); e("s_add_u32 s%d, s%d, %d" % (sT0, sT0, t0 + kk))
        else: assert False
        e("s_lshl_b32 s%d, s%d, 10" % (sT0, sT0))
        e("s_and_b32 s%d, s59, 31" % sT1); e("s_lshl_b32 s%d, s%d, 20" % (sT1, sT1)); e("s_add_u32 s%d, s%d, s%d" % (sT0, sT0, sT1))
        for w in range(4):
            e("buffer_load_dwordx4 %s, %s, %s, s%d offen" % (v(ST + 4, 4), v(ST), sr, sT0))
            if w < 3: e("s_add_u32 s%d, s%d, 0x40000" % (sT0, sT0))
        e("s_add_u32 s%d, s%d, 3" % (sCNT, sCNT)); e("s_add_u32 s59, s59, 1")
        e("s_waitcnt vmcnt(%d)" % P["pfw"])
        e("s_branch L_pfl%d" % n)
    lab("L_skip%d" % n)
    if pf: e("s_waitcnt vmcnt(0)")
    e("s_barrier")

def gather(ph, npart):
    lbl[0] += 1; n = lbl[0]
    e("s_mov_b32 s%d, 0" % sCNT)
    lab("L_g%d" % n)
    cur_off[0] = None
    ids = []
    for i in range(npart // 2):
        off = ph * 65536 + i * 4096
        so = soff(off)
        ids.append(vmem("buffer_load_dwordx4 %s, %s, %s, %s offen sc1" % (v(POOL + 4 * i, 4), v(vPLD), srd(sWS), so)))
    for i in range(npart // 2):
        vwait(ids[i])
        q = POOL + 4 * i
        if i == 0: e("v_max3_u32 %s, %s, %s, %s" % (v(vT), v(q), v(q + 1), v(q + 2))); e("v_max_u32 %s, %s, %s" % (v(vT), v(vT), v(q + 3)))
        else:
            e("v_max3_u32 %s, %s, %s, %s" % (v(vT), v(vT), v(q), v(q + 1))); e("v_max3_u32 %s, %s, %s, %s" % (v(vT), v(vT), v(q + 2), v(q + 3)))
            for k in range(4): e("v_add_f32 %s, %s, %s" % (v(POOL + k), v(POOL + k), v(q + k)))
    e("v_cmp_eq_u32 vcc, -1, %s" % v(vT))
    e("s_add_u32 s%d, s%d, 1" % (sCNT, sCNT))
    e("s_nop 3")
    e("s_cbranch_vccz L_gd%d" % n)
    e("s_cmp_ge_u32 s%d, 0x%x" % (sCNT, SPIN)); e("s_cbranch_scc1 L_gd%d" % n)
    e("s_sleep 2"); e("s_branch L_g%d" % n)
    lab("L_gd%d" % n)
    stamp(3)
    t = POOL + 4
    for k in range(4): e("v_mov_b32 %s, %s" % (v(t + k), v(POOL + k)))
    nop(2)
    for k in range(4): e("v_permlane32_swap_b32 %s, %s" % (v(POOL + k), v(t + k)))
    nop(1)
    for k in range(4): e("v_add_f32 %s, %s, %s" % (v(POOL + k), v(POOL + k), v(t + k)))
    round_bf16_pair(POOL, POOL + 1, t); round_bf16_pair(POOL + 2, POOL + 3, t)
    for k in range(4): e("v_add_f32 %s, %s, %s" % (v(vX + k), v(vX + k), v(POOL + k)))
    round_bf16_pair(vX, vX + 1, t); round_bf16_pair(vX + 2, vX + 3, t)
rst_ids = []
def reset_slots():
    for k in range(4): e("v_mov_b32 %s, -1" % v(SC + 8 + k))
    e("v_add_u32 %s, s%d, %s" % (v(vT), sT2, v(vPST)))
    for ph in range(4):
        rst_ids.append(vmem("buffer_store_dwordx4 %s, %s, %s, %s offen sc1" % (v(SC + 8, 4), v(vT), srd(sWS), soff(65536 * ph))))
def signal_reset():
    lbl[0] += 1; n = lbl[0]
    e("s_cmp_lg_u32 s%d, 0" % sW); e("s_cbranch_scc1 L_sr%d" % n)
    e("s_mov_b64 exec, 1")
    e("v_mov_b32 %s, s%d" % (v(ST), sB)); e("v_lshlrev_b32 %s, 2, %s" % (v(ST), v(ST)))
    e("v_mov_b32 %s, 1" % v(ST + 1))
    e("buffer_atomic_add %s, %s, %s, 0 offen" % (v(ST + 1), v(ST), srd(sDBG)))
    e("s_nop 1")
    e("s_mov_b64 exec, -1")
    lab("L_sr%d" % n)
def x_to_lds():
    e("ds_write_b128 %s, %s offset:%d" % (v(vXW), v(vX, 4), X1 - MISC))
    barrier()

e("s_cmp_ge_u32 s2, 256"); e("s_cbranch_scc1 L_end")
stamp(0)
e("s_load_dwordx16 s[64:79], s[0:1], 0")
e("s_load_dwordx4 s[80:83], s[0:1], 64")
e("s_load_dwordx2 s[84:85], s[0:1], 80")
e("v_lshrrev_b32 %s, 6, v0" % v(vT)); nop(1)
e("v_readfirstlane_b32 s%d, %s" % (sW, v(vT)))
e("v_and_b32 %s, 63, v0" % v(vL))
e("s_and_b32 s%d, s2, 31" % sH); e("s_lshr_b32 s%d, s2, 5" % sB)
e("s_waitcnt lgkmcnt(0)")
stamp(2)
def mk(srdr, pair, off_s, shift, size, mul=None):
    if mul is None:
        e("s_lshl_b32 s%d, s%d, %d" % (sT0, off_s, shift))
        e("s_lshr_b32 s%d, s%d, %d" % (sT1, off_s, 32 - shift))
        e("s_add_u32 s%d, s%d, s%d" % (srdr, pair, sT0)); e("s_addc_u32 s%d, s%d, s%d" % (srdr + 1, pair + 1, sT1))
    e("s_mov_b32 s%d, 0x%x" % (srdr + 2, size)); e("s_mov_b32 s%d, 0x20000" % (srdr + 3))
mk(sK, 66, 2, 20, 1 << 20); mk(sV, 68, 2, 20, 1 << 20)
mk(sX, 64, sB, 10, 1024); mk(sOUT, 80, sB, 10, 1024)
mk(sWS, 84, sB, 18, 1 << 18)
mk(sWQ, 70, sH, 8, 0); e("s_sub_u32 s%d, 0x400000, s%d" % (sWQ + 2, sT0))
mk(sWO, 72, sH, 17, 1 << 17)
e("s_min_u32 s%d, s%d, 13" % (sT2, sH))
mk(sW1, 76, sT2, 8, 0); e("s_sub_u32 s%d, 0x%x, s%d" % (sW1 + 2, 512 * 3584, sT0))
mk(sW2, 78, sT2, 17, 1 << 17)
e("s_cmp_lt_u32 s%d, 14" % sH)
e("s_cselect_b32 s%d, s%d, 0" % (sW1 + 2, sW1 + 2)); e("s_cselect_b32 s%d, s%d, 0" % (sW2 + 2, sW2 + 2))
e("s_mov_b32 s%d, s82" % sDBG); e("s_mov_b32 s%d, s83" % (sDBG + 1)); e("s_mov_b32 s%d, 256" % (sDBG + 2)); e("s_mov_b32 s%d, 0x20000" % (sDBG + 3))
e("s_lshl_b32 s%d, s%d, 11" % (sT2, sH))
e("s_lshl_b32 s%d, s%d, 25" % (sT0, sB)); e("s_lshr_b32 s%d, s%d, 7" % (sT1, sB))
e("s_add_u32 s72, s66, s%d" % sT0); e("s_addc_u32 s73, s67, s%d" % sT1); e("s_mov_b32 s74, 0x2000000"); e("s_mov_b32 s75, 0x20000")
e("s_add_u32 s76, s68, s%d" % sT0); e("s_addc_u32 s77, s69, s%d" % sT1); e("s_mov_b32 s78, 0x2000000"); e("s_mov_b32 s79, 0x20000")
e("s_mul_i32 s%d, s%d, %d" % (sLB, sW, LW))
for m, val in ((60, 0x11111111), (sM1, 0x22222222), (sM2, 0x44444444), (sM3, 0x88888888)):
    e("s_mov_b32 s%d, 0x%x" % (m, val)); e("s_mov_b32 s%d, 0x%x" % (m + 1, val))
c, g, w_, t3, t4 = ST, ST + 1, ST + 2, ST + 3, ST + 4
e("v_and_b32 %s, 15, %s" % (v(c), v(vL))); e("v_lshrrev_b32 %s, 4, %s" % (v(g), v(vL)))
e("v_mov_b32 %s, s%d" % (v(w_), sW))
e("v_and_b32 %s, 31, %s" % (v(t3), v(vL)))
e("v_lshlrev_b32 %s, 3, %s" % (v(t4), v(t3))); e("v_lshl_add_u32 %s, %s, 8, %s" % (v(ST + 5), v(w_), v(t4)))
xid = vmem("buffer_load_dwordx2 %s, %s, %s, 0 offen" % (v(vX, 2), v(ST + 5), srd(sX)))
e("v_lshlrev_b32 %s, 5, %s" % (v(vPST), v(c))); e("v_lshl_add_u32 %s, %s, 4, %s" % (v(vPST), v(g), v(vPST)))
e("v_lshl_add_u32 %s, %s, 9, %s" % (v(vPST), v(w_), v(vPST)))
e("v_add_u32 %s, 0x%x, %s" % (v(vRW), MISC, v(vPST)))
e("v_mov_b32 %s, 0x80000000" % v(vT)); e("v_cmp_gt_u32 vcc, 32, %s" % v(vL)); nop(2)
e("v_cndmask_b32 %s, %s, %s, vcc" % (v(vPST), v(vT), v(vPST)))
reset_slots()
e("v_lshl_add_u32 %s, %s, 7, %s" % (v(t4), v(w_), v(g)))
e("v_lshlrev_b32 %s, 4, %s" % (v(ST + 6), v(c)))
e("v_lshl_add_u32 %s, %s, 13, %s" % (v(vWQ), v(t4), v(ST + 6)))
e("v_lshrrev_b32 %s, 2, %s" % (v(vK), v(c))); e("v_lshlrev_b32 %s, 8, %s" % (v(vK), v(vK)))
e("v_and_b32 %s, 3, %s" % (v(vT), v(c))); e("v_lshl_add_u32 %s, %s, 2, %s" % (v(vT), v(g), v(vT)))
e("v_lshl_add_u32 %s, %s, 4, %s" % (v(vK), v(vT), v(vK))); e("v_lshl_add_u32 %s, %s, 18, %s" % (v(vK), v(w_), v(vK)))
dq.extend(range(NL + NA + NV))
q_W("wq", 0); q_streamK(0); q_V(0); q_W("wo", 0); q_W("w1", 0); q_W("w2", 0)
q_W("wq", 1); q_streamK(1); q_V(1); q_W("wo", 1); q_W("w1", 1); q_W("w2", 1)
for t in range(NR):
    tag, vo, s_, off, pol = ringq.pop(0); sl = free_slots.pop(0)
    landed[tag] = (sl, load(v(RING + 4 * sl, 4), vo, s_, off, pol))
    if t < P["pre"]: issue_direct(999, 1)
e("v_lshlrev_b32 %s, 4, %s" % (v(vV), v(vL))); e("v_mov_b32 %s, %s" % (v(vLT), v(vV)))
e("v_lshl_add_u32 %s, %s, 18, %s" % (v(vV), v(w_), v(vV)))
e("v_add_u32 %s, s%d, %s" % (v(vLT), sLB, v(vLT)))
e("s_mov_b32 s%d, 3584" % sT0); e("v_mul_lo_u32 %s, %s, s%d" % (v(vW1), v(t4), sT0)); e("v_add_u32 %s, %s, %s" % (v(vW1), v(vW1), v(ST + 6)))
e("v_lshl_add_u32 %s, %s, 10, %s" % (v(vWO), v(g), v(ST + 6))); e("v_lshl_add_u32 %s, %s, 8, %s" % (v(vWO), v(w_), v(vWO)))
e("v_lshlrev_b32 %s, 4, %s" % (v(vXW), v(t3))); e("v_lshl_add_u32 %s, %s, 9, %s" % (v(vXW), v(w_), v(vXW)))
e("v_lshrrev_b32 %s, 5, %s" % (v(vT), v(vL))); e("v_lshl_add_u32 %s, %s, 11, %s" % (v(vPLD), v(vT), v(vXW)))
e("v_add_u32 %s, 0x%x, %s" % (v(vXW), MISC, v(vXW)))
e("v_lshlrev_b32 %s, 4, %s" % (v(vP2), v(c))); e("v_lshl_add_u32 %s, %s, 2, %s" % (v(vP2), v(g), v(vP2)))
e("v_add_u32 %s, 0x%x, %s" % (v(vP2), MISC, v(vP2))); e("v_lshl_add_u32 %s, %s, 9, %s" % (v(vP2X), v(w_), v(vP2)))
e("v_and_b32 %s, 3, %s" % (v(vT), v(c))); e("v_lshl_add_u32 %s, %s, 2, %s" % (v(vT), v(g), v(vT)))
e("v_lshlrev_b32 %s, 5, %s" % (v(vQ), v(vT))); e("v_add_u32 %s, 0x%x, %s" % (v(vQ), MISC, v(vQ)))
e("v_lshlrev_b32 %s, 5, %s" % (v(vLN), v(vL))); e("v_add_u32 %s, 0x%x, %s" % (v(vLN), MISC, v(vLN)))
for k in range(4):
    e("v_mov_b32 %s, 0" % v(vM + k))
    e("v_mov_b32 %s, 0xffff" % v(vT)); e("v_cmp_eq_u32 vcc, %d, %s" % (2 * k, v(c))); nop(2)
    e("v_cndmask_b32 %s, %s, %s, vcc" % (v(vM + k), v(vM + k), v(vT)))
    e("v_mov_b32 %s, 0xffff0000" % v(vT)); e("v_cmp_eq_u32 vcc, %d, %s" % (2 * k + 1, v(c))); nop(2)
    e("v_cndmask_b32 %s, %s, %s, vcc" % (v(vM + k), v(vM + k), v(vT)))
e("v_mov_b32 %s, 0x%x" % (v(ST + 8), FLG)); e("v_mov_b32 %s, 0" % v(ST + 10)); e("v_mov_b32 %s, 0" % v(ST + 11))
e("ds_write_b64 %s, %s" % (v(ST + 8), v(ST + 10, 2)))
stamp(2)
vwait(xid)
stamp(2)
e("v_and_b32 %s, 0xffff0000, %s" % (v(vX + 3), v(vX + 1))); e("v_lshlrev_b32 %s, 16, %s" % (v(vX + 2), v(vX + 1)))
e("v_and_b32 %s, 0xffff0000, %s" % (v(vX + 1), v(vX))); e("v_lshlrev_b32 %s, 16, %s" % (v(vX), v(vX)))

def q_phase(layer):
    if layer == 0: vwait(rst_ids[-1])
    x_to_lds()
    if layer == 0: signal_reset()
    stamp(2); layernorm(); stamp(2)
    tiles = ring_tiles("wq", layer, 32, wp)
    def qhook(i):
        if layer == 0:
            if i == 32 - NR - 1: hold[0] = True
            issue_direct(NL + NA + NV, P["qissue"])
            if i == P["touch0"]: touch(["wo", "w1", "w2"], ST + 14, SC + 12)
    gemv(tiles, D0, hook=qhook); stamp(2)
    write_red(RQ, D0); barrier(); stamp(2); make_qB(); stamp(2)
def pvp(u): return (SC + (u >> 4), 4 * (u & 3) + ((u >> 2) & 3))

q_phase(0)
stamp()
for layer in range(2):
    e("; ---------------- layer %d attention ----------------" % layer)
    deep[0] = False
    qk_phase(layer)
    stamp()
    softmax()
    def vhook(i, layer=layer):
        if i == P["touch2"]: touch(["wo"], ST + 14, ST + 8)
        if i == P["touch3"]: touch(["w1", "w2", "wq"] if layer == 0 else ["w1", "w2"], ST + 14, ST + 8)
    gemv(ring_tiles("V", layer, 256, pvp), D1, hook=vhook)
    stamp()
    combine()
    deep[0] = True
    gemv(ring_tiles("wo", layer, 32, wp), D0, hold_tail=True)
    stamp()
    publish(2 * layer, D0, False)
    stamp()
    gather(2 * layer, 32)
    e("; ---------------- layer %d ffn ----------------" % layer)
    x_to_lds(); layernorm()
    gemv(ring_tiles("w1", layer, 32, wp), D0)
    write_red(RH, D0); barrier(); hidden()
    gemv(ring_tiles("w2", layer, 32, wp), D0, hold_tail=True)
    stamp()
    publish(2 * layer + 1, D0, layer == 1)
    if layer == 0: stamp()
    gather(2 * layer + 1, 14)
    if layer == 0: q_phase(1); stamp()
assert not ringq and not landed
e("v_cvt_pk_bf16_f32 %s, %s, %s" % (v(ST), v(vX), v(vX + 1)))
e("v_cvt_pk_bf16_f32 %s, %s, %s" % (v(ST + 1), v(vX + 2), v(vX + 3)))
e("v_subrev_u32 %s, 0x%x, %s" % (v(ST + 2), MISC, v(vXW)))
e("v_lshrrev_b32 %s, 1, %s" % (v(ST + 2), v(ST + 2)))
exec_lo()
vmem("buffer_store_dwordx2 %s, %s, %s, 0 offen" % (v(ST, 2), v(ST + 2), srd(sOUT)))
vwait_all()
lab("L_end")
if P["stamps"]:
    e("s_cmp_ge_u32 s2, 256"); e("s_cbranch_scc1 L_end2")
    stamp(0)
    e("s_add_u32 s%d, s84, 0x400000" % sWS); e("s_addc_u32 s%d, s85, 0" % (sWS + 1))
    e("s_lshl_b32 s54, s2, 2"); e("s_add_u32 s54, s54, s44"); e("s_lshl_b32 s54, s54, 6")
    e("s_mov_b64 exec, 1")
    for k in range(nst[0]):
        e("v_mov_b32 v1, s%d" % (86 + k)); e("v_mov_b32 v2, s54")
        e("buffer_store_dword v1, v2, %s, 0 offen offset:%d" % (srd(sWS), 4 * k)); e("s_waitcnt vmcnt(0)")
    lab("L_end2")
e("s_endpgm")

hdr = """; Persistent 2-layer decode step: one workgroup per (batch, head); K tiles kept on chip between the layers.
; @launch grid=(256,1,1) block=(256,1,1) lds=%d
.amdgcn_target "amdgcn-amd-amdhsa--gfx950"
.text
.globl %s
.p2align 8
.type %s,@function
%s:
""" % (LDS_BYTES, KN, KN, KN)
ftr = """
.section .rodata,"a"
.p2align 6
.amdhsa_kernel %s
  .amdhsa_next_free_vgpr 512
  .amdhsa_next_free_sgpr 102
  .amdhsa_accum_offset 256
  .amdhsa_group_segment_fixed_size 0
  .amdhsa_kernarg_size 88
  .amdhsa_user_sgpr_count 2
  .amdhsa_user_sgpr_kernarg_segment_ptr 1
  .amdhsa_system_sgpr_workgroup_id_x 1
.end_amdhsa_kernel
""" % KN
open(sys.argv[1], "w").write(hdr + "\n".join(l.strip() if not l.endswith(":") else l for l in out) + ftr)
print("lines", len(out), "NV", NV, "NS", NS, "RET", RET, "LDS", LDS_BYTES)
```

```python
import sys
KN = "interleave_layers__mha_block_cached__dense_activation_silu__decode_kernel"
P = dict(NR=8, NL=36, WIN=8, polK="nt", polV="nt", polK2="nt", polV2="nt", sleep=1, interleave=1, stamps=0, touch1=12, touch2=200, touch3=200, qissue=1, pf=0, pfirst="K", pfw=4, thr=0, thr2=0, thrB=0, thr2B=-1, gbit=2, t1a=8, t1b=160, t2a=122, t2b=280, km=2, kk=0, vm=2, vk=0, WS=8, polW="def", polT="def", pre=8, touch0=999)
for a in sys.argv[2:]:
    k, v = a.split("=")
    P[k] = int(v) if v.lstrip("-").isdigit() else v
NR, NL, WIN = P["NR"], P["NL"], P["WIN"]

out = []
def e(s): out.append("    " + s)
def lab(s): out.append(s + ":")
def nop(n): e("s_nop %d" % (n - 1))

sK, sV, sWQ, sWO, sW1, sW2, sWS, sDBG, sX, sOUT = 4, 8, 12, 16, 20, 24, 28, 32, 36, 40
sW, sOFF, sH, sB = 44, 45, 46, 47
sM1, sM2, sM3 = 48, 50, 52
sT0, sT1, sT2, sCNT, sLB = 54, 55, 56, 57, 58
def srd(r): return "s[%d:%d]" % (r, r + 3)
vL, vK, vV, vWQ, vW1, vWO, vPST, vPLD, vLT, vP2, vP2X, vRW, vXW, vQ, vLN, vT = range(16)
vM = 16; vX = 20
RING = 24
POOL = RING + 4 * NR
QB = POOL; SC = POOL + 16; D0 = POOL + 32; D1 = POOL + 36; A0 = POOL + 40; A1 = POOL + 44; ST = POOL + 48
RET = POOL + 64
NV = (256 - RET) // 4
NA = 64
NS = 256 - NL - NA - NV
def v(r, n=1): return "v%d" % r if n == 1 else "v[%d:%d]" % (r, r + n - 1)
def a(r, n=4): return "a[%d:%d]" % (r, r + n - 1)
LW = NL * 1024
MISC = 4 * LW
X1, RQ, RO, RH, ML, FLG = MISC, MISC + 2048, MISC + 4096, MISC + 6144, MISC + 8192, MISC + 8256
LDS_BYTES = MISC + 8320
assert LDS_BYTES <= 163840
CEXP = 1.4426950408889634 / (128 ** 0.5)
import struct
def f2u(x): return struct.unpack("<I", struct.pack("<f", x))[0]

vm = []; vmid = [0]
def vmem(s):
    e(s); vmid[0] += 1; vm.append(vmid[0]); return vmid[0]
def vwait(i):
    if i in vm:
        k = vm.index(i); n = len(vm) - 1 - k
        e("s_waitcnt vmcnt(%d)" % min(n, 63))
        del vm[:k + 1]
def vwait_all():
    e("s_waitcnt vmcnt(0)"); vm.clear()
cur_off = [None]
def soff(x):
    if x == 0: return "0"
    if cur_off[0] != x:
        e("s_mov_b32 s%d, 0x%x" % (sOFF, x)); cur_off[0] = x
    return "s%d" % sOFF
def load(dst, vo, s, off, pol=""):
    so = soff(off & ~4095)
    return vmem("buffer_load_dwordx4 %s, %s, %s, %s offen offset:%d %s" % (dst, v(vo), srd(s), so, off & 4095, pol if pol != "def" else ""))
def load_lds(tile, pol):
    off = tile * 1024
    so = soff(off & ~4095)
    if tile % 4 == 0 or True:
        e("s_add_u32 m0, s%d, 0x%x" % (sLB, off & ~4095)); nop(1)
    return vmem("buffer_load_dwordx4 %s, %s, %s offen offset:%d %s lds" % (v(vK), srd(sK), so, off & 4095, pol if pol != "def" else ""))

nst = [0]
def stamp(lvl=1):
    if P["stamps"] != lvl and not (lvl == 0 and P["stamps"]): return
    if nst[0] >= 16: return
    e("s_memrealtime s[62:63]"); e("s_waitcnt lgkmcnt(0)"); e("s_mov_b32 s%d, s62" % (86 + nst[0])); nst[0] += 1
ringq = []
free_slots = list(range(NR))
landed = {}
hold = [False]
deep = [False]
thn = [0]
def pump():
    while ringq and free_slots and not hold[0]:
        if ringq[0][0][0] in ("K", "V") and not deep[0] and len(landed) >= P["WS"]: break
        tag, vo, s, off, pol = ringq.pop(0)
        sl = free_slots.pop(0)
        if P["thr"] and tag[0] in ("K", "V"):
            n0 = NL + NA + NV
            idx = tag[2] - n0 if tag[0] == "K" else 256 - n0 + tag[2]
            lo_, hi_ = (P["t1a"], P["t1b"]) if tag[1] == 0 else (P["t2a"], P["t2b"])
            if lo_ <= idx < hi_:
                thn[0] += 1
                e("s_bitcmp1_b32 s%d, %d" % (sB, P["gbit"]))
                e("s_cbranch_scc%d L_th%d" % (0 if tag[1] == 0 else 1, thn[0]))
                e("s_waitcnt vmcnt(%d)" % ((P["thr"] if tag[1] == 0 or not P["thrB"] else P["thrB"]) - 1))
                lab("L_th%d" % thn[0])
                t2_ = P["thr2"] if tag[1] == 0 or P["thr2B"] < 0 else P["thr2B"]
                if t2_: e("s_waitcnt vmcnt(%d)" % (t2_ - 1))
        landed[tag] = (sl, load(v(RING + 4 * sl, 4), vo, s, off, pol))
def ring_get(tag):
    if tag not in landed:
        assert not hold[0]; pump()
    sl, i = landed[tag]; vwait(i); return v(RING + 4 * sl, 4)
def ring_done(tag):
    sl, _ = landed.pop(tag); free_slots.append(sl); pump()

def ksrc(u):
    if u < NL: return ("L", u)
    if u < NL + NA: return ("R", a(4 * (u - NL)))
    if u < NL + NA + NV: return ("R", v(RET + 4 * (u - NL - NA), 4))
    return ("S", None)
def q_streamK(layer):
    for u in range(NL + NA + NV, 256):
        ringq.append((("K", layer, u), vK, sK, u * 1024, (("def" if u % P["km"] < P["kk"] else P["polK"]) if layer == 0 else P["polK2"])))
def q_V(layer):
    for u in range(256):
        ringq.append((("V", layer, u), vV, sV, u * 1024, (("def" if u % P["vm"] < P["vk"] else P["polV"]) if layer == 0 else P["polV2"])))
def q_W(name, layer):
    vo, s, stride = {"wo": (vWO, sWO, 4096), "w2": (vWO, sW2, 4096), "wq": (vWQ, sWQ, 4 * 8192), "w1": (vW1, sW1, 4 * 3584)}[name]
    for t in range(32):
        ringq.append(((name, layer, t), vo, s, t * stride, P["polW"]))

DPP = "row_mask:0xf bank_mask:0xf"
def allreduce(op, x, t):
    for r in (8, 4, 2, 1):
        nop(2); e("%s_dpp %s, %s, %s row_ror:%d %s" % (op, v(x), v(x), v(x), r, DPP))
    for sw in ("v_permlane16_swap_b32", "v_permlane32_swap_b32"):
        e("v_mov_b32 %s, %s" % (v(t), v(x))); nop(2)
        e("%s %s, %s" % (sw, v(x), v(t))); nop(1)
        e("%s %s, %s, %s" % (op, v(x), v(x), v(t)))
def barrier():
    e("s_waitcnt lgkmcnt(0)"); e("s_barrier")
def exec_lo(): e("s_mov_b32 exec_hi, 0")
def exec_all(): e("s_mov_b32 exec_hi, -1")
def buildA(dst, p, j):
    for k in range(4):
        e("v_and_b32_dpp %s, %s, %s row_newbcast:%d %s" % (v(dst + k), v(p), v(vM + k), j, DPP))
def gemv(tiles, acc, hold_tail=False, hook=None):
    n = len(tiles)
    buildA(A0, tiles[0][2], tiles[0][3])
    for i, (get, done, p, j) in enumerate(tiles):
        if hold_tail and i == n - NR: hold[0] = True
        cur = A0 if i % 2 == 0 else A1
        nxt = A1 if i % 2 == 0 else A0
        if i + 1 < n: buildA(nxt, tiles[i + 1][2], tiles[i + 1][3])
        else: nop(2)
        b = get()
        e("v_mfma_f32_16x16x32_bf16 %s, %s, %s, %s" % (v(acc, 4), v(cur, 4), b, "0" if i == 0 else v(acc, 4)))
        done()
        if hook: hook(i)
    nop(8)
def ring_tiles(name, layer, n, pfn):
    r = []
    for t in range(n):
        tag = (name, layer, t); p, j = pfn(t)
        r.append((lambda tag=tag: ring_get(tag), lambda tag=tag: ring_done(tag), p, j))
    return r
def round_bf16_pair(x, y, t):
    e("v_cvt_pk_bf16_f32 %s, %s, %s" % (v(t), v(x), v(y)))
    e("v_lshlrev_b32 %s, 16, %s" % (v(x), v(t)))
    e("v_and_b32 %s, 0xffff0000, %s" % (v(y), v(t)))

def layernorm():
    t = ST
    e("ds_read_b128 %s, %s offset:%d" % (v(t, 4), v(vLN), X1 - MISC))
    e("ds_read_b128 %s, %s offset:%d" % (v(t + 4, 4), v(vLN), X1 - MISC + 16))
    e("ds_read_b32 %s, %s offset:%d" % (v(t + 12), v(vP2X), X1 - MISC))
    e("ds_read_b32 %s, %s offset:%d" % (v(t + 13), v(vP2X), X1 - MISC + 256))
    e("s_waitcnt lgkmcnt(2)")
    s = t + 8
    e("v_add_f32 %s, %s, %s" % (v(s), v(t), v(t + 1)))
    for k in range(2, 8): e("v_add_f32 %s, %s, %s" % (v(s), v(s), v(t + k)))
    allreduce("v_add_f32", s, t + 9)
    e("v_mul_f32 %s, 0x%x, %s" % (v(s), f2u(1.0 / 512), v(s)))
    for k in range(8): e("v_sub_f32 %s, %s, %s" % (v(t + k), v(t + k), v(s)))
    q = t + 10
    e("v_mul_f32 %s, %s, %s" % (v(q), v(t), v(t)))
    for k in range(1, 8): e("v_fmac_f32 %s, %s, %s" % (v(q), v(t + k), v(t + k)))
    allreduce("v_add_f32", q, t + 9)
    e("v_mov_b32 %s, 0x%x" % (v(t + 9), f2u(1e-5)))
    e("v_fmac_f32 %s, 0x%x, %s" % (v(t + 9), f2u(1.0 / 512), v(q)))
    e("v_rsq_f32 %s, %s" % (v(q), v(t + 9)))
    e("s_waitcnt lgkmcnt(0)")
    for k in range(2):
        e("v_sub_f32 %s, %s, %s" % (v(t + 12 + k), v(t + 12 + k), v(s)))
        e("v_mul_f32 %s, %s, %s" % (v(t + 12 + k), v(t + 12 + k), v(q)))
        e("v_cvt_pk_bf16_f32 %s, %s, %s" % (v(SC + k), v(t + 12 + k), v(t + 12 + k)))
    nop(2)
def write_red(area, acc):
    exec_lo()
    e("ds_write_b128 %s, %s offset:%d" % (v(vRW), v(acc, 4), area - MISC))
    exec_all()
def wp(t): return (SC + (t >> 4), t & 15)

def make_qB():
    t = ST
    for w in range(4):
        d = t if w == 0 else t + 8
        e("ds_read_b128 %s, %s offset:%d" % (v(d, 4), v(vQ), RQ - MISC + w * 512))
        e("ds_read_b128 %s, %s offset:%d" % (v(d + 4, 4), v(vQ), RQ - MISC + w * 512 + 16))
        if w > 0:
            e("s_waitcnt lgkmcnt(0)")
            for k in range(8): e("v_add_f32 %s, %s, %s" % (v(t + k), v(t + k), v(t + 8 + k)))
    for k in range(4):
        e("v_cvt_pk_bf16_f32 %s, %s, %s" % (v(t + 8 + k), v(t + 2 * k), v(t + 2 * k + 1)))
    e("v_lshrrev_b32 %s, 2, %s" % (v(t), v(vL)))
    e("v_and_b32 %s, 3, %s" % (v(t), v(t)))
    for tt in range(4):
        e("v_cmp_eq_u32 vcc, %d, %s" % (tt, v(t))); nop(2)
        for k in range(4): e("v_cndmask_b32 %s, 0, %s, vcc" % (v(QB + 4 * tt + k), v(t + 8 + k)))
    nop(2)

dq = []; did = {}
def issue_direct(upto, n=999):
    while dq and dq[0] <= upto and n > 0:
        u = dq.pop(0); k, r = ksrc(u); n -= 1
        did[u] = load_lds(u, P["polK"]) if k == "L" else load(r, vK, sK, u * 1024, P["polK"])
def touch(names, areg, dreg):
    for nm in names:
        e("s_lshl_b32 s%d, s%d, 2" % (sT0, sB)); e("s_add_u32 s%d, s%d, s%d" % (sT0, sT0, sW))
        sr = srd({"wo": sWO, "w2": sW2, "w1": sW1, "wq": sWQ}[nm])
        if nm in ("wo", "w2"):
            e("s_lshl_b32 s%d, s%d, 12" % (sT0, sT0))
            e("v_lshlrev_b32 %s, 4, %s" % (v(areg), v(vL)))
            for k in range(4):
                vmem("buffer_load_dwordx4 %s, %s, %s, s%d offen offset:%d %s" % (v(dreg, 4), v(areg), sr, sT0, 1024 * k, P["polT"].replace("def", "")))
        else:
            st = 8192 if nm == "wq" else 3584
            e("s_mul_i32 s%d, s%d, %d" % (sT0, sT0, 16 * st))
            e("v_lshrrev_b32 %s, 4, %s" % (v(areg), v(vL))); e("v_mul_u32_u24 %s, %d, %s" % (v(areg), st, v(areg)))
            e("v_and_b32 %s, 15, %s" % (v(vT), v(vL))); e("v_lshl_add_u32 %s, %s, 4, %s" % (v(areg), v(vT), v(areg)))
            for k in range(4):
                vmem("buffer_load_dwordx4 %s, %s, %s, s%d offen %s" % (v(dreg, 4), v(areg), sr, sT0, P["polT"].replace("def", "")))
                if k < 3: e("s_add_u32 s%d, s%d, %d" % (sT0, sT0, 4 * st))
def qk_phase(layer):
    groups = list(range(64))
    def srcs(gi): return [ksrc(4 * gi + t)[0] for t in range(4)]
    if layer == 1 and P["interleave"]:
        st = [g for g in groups if "S" in srcs(g)]; rt = [g for g in groups if "S" not in srcs(g)]
        order = []
        ns, nr_ = len(st), len(rt); ri = 0
        for k, g in enumerate(st):
            order.append(g)
            while ri * ns < (k + 1) * nr_: order.append(rt[ri]); ri += 1
        order += rt[ri:]
    else:
        order = groups
    if layer == 1: dq.clear()
    written = set()
    def reduce(gi, D):
        G, i = gi >> 2, gi & 3
        tmp = A0
        e("v_mov_b32_dpp %s, %s quad_perm:[0,0,0,0] %s" % (v(tmp), v(D), DPP))
        for k in (1, 2, 3):
            e("v_add_f32_dpp %s, %s, %s quad_perm:[%d,%d,%d,%d] %s" % (v(tmp), v(D + k), v(tmp), k, k, k, k, DPP))
        m = {0: 60, 1: sM1, 2: sM2, 3: sM3}[i]
        if G not in written:
            e("v_mov_b32 %s, %s" % (v(SC + G), v(tmp))); written.add(G)
        else:
            e("v_cndmask_b32 %s, %s, %s, s[%d:%d]" % (v(SC + G), v(SC + G), v(tmp), m, m + 1))
    prev = None
    staged = {}
    def stage(gi):
        for t in range(4):
            u = 4 * gi + t
            if ksrc(u)[0] == "L":
                if layer == 0: vwait(did[u])
                e("ds_read_b128 %s, %s offset:%d" % (v(ST + 4 * t, 4), v(vLT), u * 1024))
        staged[gi] = True
    for n, gi in enumerate(order):
        D = D0 if n % 2 == 0 else D1
        if "L" in srcs(gi) and gi not in staged: stage(gi)
        if "L" in srcs(gi): e("s_waitcnt lgkmcnt(0)")
        for t in range(4):
            u = 4 * gi + t; k, r = ksrc(u)
            if layer == 0:
                issue_direct(u + WIN)
                if not dq and hold[0]: hold[0] = False; pump()
            if k == "L": b = v(ST + 4 * t, 4)
            elif k == "R":
                if layer == 0: vwait(did[u])
                b = r
            else: b = ring_get(("K", layer, u))
            e("v_mfma_f32_16x16x32_bf16 %s, %s, %s, %s" % (v(D, 4), b, v(QB + 4 * t, 4), "0" if t == 0 else v(D, 4)))
            if k == "S": ring_done(("K", layer, u))
        if n + 1 < len(order) and "L" in srcs(order[n + 1]): stage(order[n + 1])
        if prev is not None:
            nop(4); reduce(*prev)
        pass
        prev = (gi, D)
    nop(8); reduce(*prev)

def softmax():
    m, t = D0, D0 + 1
    e("v_max3_f32 %s, %s, %s, %s" % (v(m), v(SC), v(SC + 1), v(SC + 2)))
    for k in range(3, 15, 2): e("v_max3_f32 %s, %s, %s, %s" % (v(m), v(m), v(SC + k), v(SC + k + 1)))
    e("v_max_f32 %s, %s, %s" % (v(m), v(m), v(SC + 15)))
    allreduce("v_max_f32", m, t)
    e("s_mov_b32 s%d, 0x%x" % (sT0, f2u(CEXP)))
    e("v_mul_f32 %s, s%d, %s" % (v(t), sT0, v(m)))
    for k in range(16): e("v_fma_f32 %s, %s, s%d, -%s" % (v(SC + k), v(SC + k), sT0, v(t)))
    for k in range(16): e("v_exp_f32 %s, %s" % (v(SC + k), v(SC + k)))
    l = D0 + 2
    nop(1)
    e("v_add_f32 %s, %s, %s" % (v(l), v(SC), v(SC + 1)))
    for k in range(2, 16): e("v_add_f32 %s, %s, %s" % (v(l), v(l), v(SC + k)))
    for k in range(16): e("v_cvt_pk_bf16_f32 %s, %s, %s" % (v(SC + k), v(SC + k), v(SC + k)))
    allreduce("v_add_f32", l, t)
    e("v_mul_f32 %s, s%d, %s" % (v(vT), sT0, v(m)))
    e("v_mov_b32 %s, %s" % (v(ST + 13), v(l)))
    e("v_mov_b32 %s, %s" % (v(ST + 12), v(vT)))
    nop(2)

def combine():
    write_red(RO, D1)
    e("v_mov_b32 %s, s%d" % (v(vT), sW)); e("v_lshlrev_b32 %s, 3, %s" % (v(vT), v(vT)))
    e("v_add_u32 %s, 0x%x, %s" % (v(vT), ML, v(vT)))
    e("ds_write_b64 %s, %s" % (v(vT), v(ST + 12, 2)))
    barrier()
    t = ST
    e("v_mov_b32 %s, 0x%x" % (v(vT), ML))
    e("ds_read_b128 %s, %s" % (v(t, 4), v(vT)))
    e("ds_read_b128 %s, %s offset:16" % (v(t + 4, 4), v(vT)))
    for w in range(4):
        for G in range(2):
            e("ds_read_b32 %s, %s offset:%d" % (v(QB + 2 * w + G), v(vP2), RO - MISC + w * 512 + G * 256))
    e("s_waitcnt lgkmcnt(8)")
    M = t + 8
    e("v_max3_f32 %s, %s, %s, %s" % (v(M), v(t), v(t + 2), v(t + 4)))
    e("v_max_f32 %s, %s, %s" % (v(M), v(M), v(t + 6)))
    for w in range(4): e("v_sub_f32 %s, %s, %s" % (v(t + 2 * w), v(t + 2 * w), v(M)))
    for w in range(4): e("v_exp_f32 %s, %s" % (v(t + 2 * w), v(t + 2 * w)))
    nop(1)
    e("v_mul_f32 %s, %s, %s" % (v(M), v(t), v(t + 1)))
    for w in range(1, 4): e("v_fmac_f32 %s, %s, %s" % (v(M), v(t + 2 * w), v(t + 2 * w + 1)))
    e("v_rcp_f32 %s, %s" % (v(M), v(M)))
    e("s_waitcnt lgkmcnt(0)")
    for G in range(2):
        e("v_mul_f32 %s, %s, %s" % (v(t + 10 + G), v(QB + G), v(t)))
        for w in range(1, 4): e("v_fmac_f32 %s, %s, %s" % (v(t + 10 + G), v(QB + 2 * w + G), v(t + 2 * w)))
        e("v_mul_f32 %s, %s, %s" % (v(t + 10 + G), v(t + 10 + G), v(M)))
        e("v_cvt_pk_bf16_f32 %s, %s, %s" % (v(SC + G), v(t + 10 + G), v(t + 10 + G)))
    nop(2)

def hidden():
    t = ST
    for w in range(4):
        for G in range(2):
            e("ds_read_b32 %s, %s offset:%d" % (v(t + 2 * w + G), v(vP2), RH - MISC + w * 512 + G * 256))
    e("s_waitcnt lgkmcnt(0)")
    for G in range(2):
        for w in range(1, 4): e("v_add_f32 %s, %s, %s" % (v(t + G), v(t + G), v(t + 2 * w + G)))
    round_bf16_pair(t, t + 1, t + 2)
    for G in range(2):
        e("v_mul_f32 %s, 0x%x, %s" % (v(t + 4 + G), f2u(-1.4426950408889634), v(t + G)))
    for G in range(2): e("v_exp_f32 %s, %s" % (v(t + 4 + G), v(t + 4 + G)))
    nop(1)
    for G in range(2): e("v_add_f32 %s, 1.0, %s" % (v(t + 4 + G), v(t + 4 + G)))
    for G in range(2): e("v_rcp_f32 %s, %s" % (v(t + 4 + G), v(t + 4 + G)))
    nop(1)
    for G in range(2):
        e("v_mul_f32 %s, %s, %s" % (v(t + G), v(t + G), v(t + 4 + G)))
        e("v_cvt_pk_bf16_f32 %s, %s, %s" % (v(SC + G), v(t + G), v(t + G)))
    nop(2)

lbl = [0]
SPIN = 0x40000
def publish(ph, acc, last):
    npart = 32 if ph % 2 == 0 else 14
    e("s_mov_b32 s%d, 0xfffffffe" % sT0)
    for k in range(4): e("v_min_u32 %s, s%d, %s" % (v(acc + k), sT0, v(acc + k)))
    so = soff(65536 * ph)
    e("v_add_u32 %s, s%d, %s" % (v(vT), sT2, v(vPST)))
    vmem("buffer_store_dwordx4 %s, %s, %s, %s offen sc1" % (v(acc, 4), v(vT), srd(sWS), so))
    if last:
        e("s_cmp_lg_u32 s%d, 31" % sH); e("s_cbranch_scc1 L_end")
    hold[0] = False; pump()
    lbl[0] += 1; n = lbl[0]
    stamp(3)
    pf = P["pf"] and ph < 2 and (ph == 0 or P["pf"] > 1)
    e("s_cmp_lg_u32 s%d, 0" % sW); e("s_cbranch_scc1 L_%s%d" % ("pf" if pf else "skip", n))
    e("s_mov_b32 s%d, 0" % sCNT)
    if ph == 0:
        e("v_mov_b32 %s, s%d" % (v(ST), sB)); e("v_lshlrev_b32 %s, 2, %s" % (v(ST), v(ST)))
        e("s_mov_b64 exec, 1")
        lab("L_rst%d" % n)
        e("buffer_load_dword %s, %s, %s, 0 offen sc1" % (v(ST + 2), v(ST), srd(sDBG)))
        e("s_waitcnt vmcnt(0)")
        e("v_readfirstlane_b32 s%d, %s" % (sT0, v(ST + 2)))
        e("s_add_u32 s%d, s%d, 1" % (sCNT, sCNT))
        e("s_cmp_ge_u32 s%d, 32" % sT0); e("s_cbranch_scc1 L_rstd%d" % n)
        e("s_cmp_ge_u32 s%d, 0x%x" % (sCNT, SPIN)); e("s_cbranch_scc1 L_rstd%d" % n)
        e("s_sleep 8"); e("s_branch L_rst%d" % n)
        lab("L_rstd%d" % n)
        e("s_mov_b64 exec, -1")
    e("v_lshlrev_b32 %s, 11, %s" % (v(ST), v(vL))); e("v_add_u32 %s, 0x%x, %s" % (v(ST), ph * 65536 + 2044, v(ST)))
    e("s_mov_b32 exec_lo, 0x%x" % ((1 << npart) - 1)); e("s_mov_b32 exec_hi, 0")
    lab("L_poll%d" % n)
    e("buffer_load_dword %s, %s, %s, 0 offen sc1" % (v(ST + 2), v(ST), srd(sWS)))
    e("s_waitcnt vmcnt(0)")
    e("v_cmp_eq_u32 vcc, -1, %s" % v(ST + 2))
    e("s_add_u32 s%d, s%d, 1" % (sCNT, sCNT))
    e("s_nop 3")
    e("s_and_b64 exec, exec, vcc"); e("s_cbranch_scc0 L_done%d" % n)
    e("s_cmp_ge_u32 s%d, 0x%x" % (sCNT, SPIN)); e("s_cbranch_scc1 L_done%d" % n)
    e("s_sleep %d" % P["sleep"]); e("s_branch L_poll%d" % n)
    lab("L_done%d" % n)
    e("s_mov_b64 exec, -1")
    if pf:
        e("v_mov_b32 %s, 0x%x" % (v(ST), FLG + 4 * ph)); e("v_mov_b32 %s, 1" % v(ST + 1))
        e("ds_write_b32 %s, %s" % (v(ST), v(ST + 1))); e("s_waitcnt lgkmcnt(0)")
        e("s_branch L_skip%d" % n)
        lab("L_pf%d" % n)
        isK = (ph == 0) == (P["pfirst"] == "K")
        km, kk = (P["km"], P["kk"]) if isK else (P["vm"], P["vk"])
        t0 = ((NL + NA + NV + km - 1) // km) * km if isK else 0
        per = km - kk
        nper = (256 - t0) // km
        sr = "s[72:75]" if isK else "s[76:79]"
        e("v_lshlrev_b32 %s, 4, %s" % (v(ST), v(vL))); e("v_mov_b32 %s, 0x%x" % (v(ST + 1), FLG + 4 * ph))
        e("s_sub_u32 s%d, s%d, 1" % (sCNT, sW))
        e("s_mov_b32 s59, s%d" % sH)
        lab("L_pfl%d" % n)
        e("ds_read_b32 %s, %s" % (v(ST + 2), v(ST + 1))); e("s_waitcnt lgkmcnt(0)")
        e("v_readfirstlane_b32 s%d, %s" % (sT0, v(ST + 2)))
        e("s_cmp_eq_u32 s%d, 1" % sT0); e("s_cbranch_scc1 L_skip%d" % n)
        e("s_cmp_ge_u32 s%d, %d" % (sCNT, nper * per)); e("s_cbranch_scc1 L_skip%d" % n)
        if per == 1: e("s_mul_i32 s%d, s%d, %d" % (sT0, sCNT, km)); e("s_add_u32 s%d, s%d, %d" % (sT0, sT0, t0 + kk))
        elif per == 2:
            e("s_lshr_b32 s%d, s%d, 1" % (sT0, sCNT)); e("s_mul_i32 s%d, s%d, %d" % (sT0, sT0, km))
            e("s_and_b32 s%d, s%d, 1" % (sT1, sCNT)); e("s_add_u32 s%d, s%d, s%d" % (sT0, sT0, sT1)); e("s_add_u32 s%d, s%d, %d" % (sT0, sT0, t0 + kk))
        else: assert False
        e("s_lshl_b32 s%d, s%d, 10" % (sT0, sT0))
        e("s_and_b32 s%d, s59, 31" % sT1); e("s_lshl_b32 s%d, s%d, 20" % (sT1, sT1)); e("s_add_u32 s%d, s%d, s%d" % (sT0, sT0, sT1))
        for w in range(4):
            e("buffer_load_dwordx4 %s, %s, %s, s%d offen" % (v(ST + 4, 4), v(ST), sr, sT0))
            if w < 3: e("s_add_u32 s%d, s%d, 0x40000" % (sT0, sT0))
        e("s_add_u32 s%d, s%d, 3" % (sCNT, sCNT)); e("s_add_u32 s59, s59, 1")
        e("s_waitcnt vmcnt(%d)" % P["pfw"])
        e("s_branch L_pfl%d" % n)
    lab("L_skip%d" % n)
    if pf: e("s_waitcnt vmcnt(0)")
    e("s_barrier")

def gather(ph, npart):
    lbl[0] += 1; n = lbl[0]
    e("s_mov_b32 s%d, 0" % sCNT)
    lab("L_g%d" % n)
    cur_off[0] = None
    ids = []
    for i in range(npart // 2):
        off = ph * 65536 + i * 4096
        so = soff(off)
        ids.append(vmem("buffer_load_dwordx4 %s, %s, %s, %s offen sc1" % (v(POOL + 4 * i, 4), v(vPLD), srd(sWS), so)))
    for i in range(npart // 2):
        vwait(ids[i])
        q = POOL + 4 * i
        if i == 0: e("v_max3_u32 %s, %s, %s, %s" % (v(vT), v(q), v(q + 1), v(q + 2))); e("v_max_u32 %s, %s, %s" % (v(vT), v(vT), v(q + 3)))
        else:
            e("v_max3_u32 %s, %s, %s, %s" % (v(vT), v(vT), v(q), v(q + 1))); e("v_max3_u32 %s, %s, %s, %s" % (v(vT), v(vT), v(q + 2), v(q + 3)))
            for k in range(4): e("v_add_f32 %s, %s, %s" % (v(POOL + k), v(POOL + k), v(q + k)))
    e("v_cmp_eq_u32 vcc, -1, %s" % v(vT))
    e("s_add_u32 s%d, s%d, 1" % (sCNT, sCNT))
    e("s_nop 3")
    e("s_cbranch_vccz L_gd%d" % n)
    e("s_cmp_ge_u32 s%d, 0x%x" % (sCNT, SPIN)); e("s_cbranch_scc1 L_gd%d" % n)
    e("s_sleep 2"); e("s_branch L_g%d" % n)
    lab("L_gd%d" % n)
    stamp(3)
    t = POOL + 4
    for k in range(4): e("v_mov_b32 %s, %s" % (v(t + k), v(POOL + k)))
    nop(2)
    for k in range(4): e("v_permlane32_swap_b32 %s, %s" % (v(POOL + k), v(t + k)))
    nop(1)
    for k in range(4): e("v_add_f32 %s, %s, %s" % (v(POOL + k), v(POOL + k), v(t + k)))
    round_bf16_pair(POOL, POOL + 1, t); round_bf16_pair(POOL + 2, POOL + 3, t)
    for k in range(4): e("v_add_f32 %s, %s, %s" % (v(vX + k), v(vX + k), v(POOL + k)))
    round_bf16_pair(vX, vX + 1, t); round_bf16_pair(vX + 2, vX + 3, t)
rst_ids = []
def reset_slots():
    for k in range(4): e("v_mov_b32 %s, -1" % v(SC + 8 + k))
    e("v_add_u32 %s, s%d, %s" % (v(vT), sT2, v(vPST)))
    for ph in range(4):
        rst_ids.append(vmem("buffer_store_dwordx4 %s, %s, %s, %s offen sc1" % (v(SC + 8, 4), v(vT), srd(sWS), soff(65536 * ph))))
def signal_reset():
    lbl[0] += 1; n = lbl[0]
    e("s_cmp_lg_u32 s%d, 0" % sW); e("s_cbranch_scc1 L_sr%d" % n)
    e("s_mov_b64 exec, 1")
    e("v_mov_b32 %s, s%d" % (v(ST), sB)); e("v_lshlrev_b32 %s, 2, %s" % (v(ST), v(ST)))
    e("v_mov_b32 %s, 1" % v(ST + 1))
    e("buffer_atomic_add %s, %s, %s, 0 offen" % (v(ST + 1), v(ST), srd(sDBG)))
    e("s_nop 1")
    e("s_mov_b64 exec, -1")
    lab("L_sr%d" % n)
def x_to_lds():
    e("ds_write_b128 %s, %s offset:%d" % (v(vXW), v(vX, 4), X1 - MISC))
    barrier()

e("s_cmp_ge_u32 s2, 256"); e("s_cbranch_scc1 L_end")
stamp(0)
e("s_load_dwordx16 s[64:79], s[0:1], 0")
e("s_load_dwordx4 s[80:83], s[0:1], 64")
e("s_load_dwordx2 s[84:85], s[0:1], 80")
e("v_lshrrev_b32 %s, 6, v0" % v(vT)); nop(1)
e("v_readfirstlane_b32 s%d, %s" % (sW, v(vT)))
e("v_and_b32 %s, 63, v0" % v(vL))
e("s_and_b32 s%d, s2, 31" % sH); e("s_lshr_b32 s%d, s2, 5" % sB)
e("s_waitcnt lgkmcnt(0)")
stamp(2)
def mk(srdr, pair, off_s, shift, size, mul=None):
    if mul is None:
        e("s_lshl_b32 s%d, s%d, %d" % (sT0, off_s, shift))
        e("s_lshr_b32 s%d, s%d, %d" % (sT1, off_s, 32 - shift))
        e("s_add_u32 s%d, s%d, s%d" % (srdr, pair, sT0)); e("s_addc_u32 s%d, s%d, s%d" % (srdr + 1, pair + 1, sT1))
    e("s_mov_b32 s%d, 0x%x" % (srdr + 2, size)); e("s_mov_b32 s%d, 0x20000" % (srdr + 3))
mk(sK, 66, 2, 20, 1 << 20); mk(sV, 68, 2, 20, 1 << 20)
mk(sX, 64, sB, 10, 1024); mk(sOUT, 80, sB, 10, 1024)
mk(sWS, 84, sB, 18, 1 << 18)
mk(sWQ, 70, sH, 8, 0); e("s_sub_u32 s%d, 0x400000, s%d" % (sWQ + 2, sT0))
mk(sWO, 72, sH, 17, 1 << 17)
e("s_min_u32 s%d, s%d, 13" % (sT2, sH))
mk(sW1, 76, sT2, 8, 0); e("s_sub_u32 s%d, 0x%x, s%d" % (sW1 + 2, 512 * 3584, sT0))
mk(sW2, 78, sT2, 17, 1 << 17)
e("s_cmp_lt_u32 s%d, 14" % sH)
e("s_cselect_b32 s%d, s%d, 0" % (sW1 + 2, sW1 + 2)); e("s_cselect_b32 s%d, s%d, 0" % (sW2 + 2, sW2 + 2))
e("s_mov_b32 s%d, s82" % sDBG); e("s_mov_b32 s%d, s83" % (sDBG + 1)); e("s_mov_b32 s%d, 256" % (sDBG + 2)); e("s_mov_b32 s%d, 0x20000" % (sDBG + 3))
e("s_lshl_b32 s%d, s%d, 11" % (sT2, sH))
e("s_lshl_b32 s%d, s%d, 25" % (sT0, sB)); e("s_lshr_b32 s%d, s%d, 7" % (sT1, sB))
e("s_add_u32 s72, s66, s%d" % sT0); e("s_addc_u32 s73, s67, s%d" % sT1); e("s_mov_b32 s74, 0x2000000"); e("s_mov_b32 s75, 0x20000")
e("s_add_u32 s76, s68, s%d" % sT0); e("s_addc_u32 s77, s69, s%d" % sT1); e("s_mov_b32 s78, 0x2000000"); e("s_mov_b32 s79, 0x20000")
e("s_mul_i32 s%d, s%d, %d" % (sLB, sW, LW))
for m, val in ((60, 0x11111111), (sM1, 0x22222222), (sM2, 0x44444444), (sM3, 0x88888888)):
    e("s_mov_b32 s%d, 0x%x" % (m, val)); e("s_mov_b32 s%d, 0x%x" % (m + 1, val))
c, g, w_, t3, t4 = ST, ST + 1, ST + 2, ST + 3, ST + 4
e("v_and_b32 %s, 15, %s" % (v(c), v(vL))); e("v_lshrrev_b32 %s, 4, %s" % (v(g), v(vL)))
e("v_mov_b32 %s, s%d" % (v(w_), sW))
e("v_and_b32 %s, 31, %s" % (v(t3), v(vL)))
e("v_lshlrev_b32 %s, 3, %s" % (v(t4), v(t3))); e("v_lshl_add_u32 %s, %s, 8, %s" % (v(ST + 5), v(w_), v(t4)))
xid = vmem("buffer_load_dwordx2 %s, %s, %s, 0 offen" % (v(vX, 2), v(ST + 5), srd(sX)))
e("v_lshlrev_b32 %s, 5, %s" % (v(vPST), v(c))); e("v_lshl_add_u32 %s, %s, 4, %s" % (v(vPST), v(g), v(vPST)))
e("v_lshl_add_u32 %s, %s, 9, %s" % (v(vPST), v(w_), v(vPST)))
e("v_add_u32 %s, 0x%x, %s" % (v(vRW), MISC, v(vPST)))
e("v_mov_b32 %s, 0x80000000" % v(vT)); e("v_cmp_gt_u32 vcc, 32, %s" % v(vL)); nop(2)
e("v_cndmask_b32 %s, %s, %s, vcc" % (v(vPST), v(vT), v(vPST)))
reset_slots()
e("v_lshl_add_u32 %s, %s, 7, %s" % (v(t4), v(w_), v(g)))
e("v_lshlrev_b32 %s, 4, %s" % (v(ST + 6), v(c)))
e("v_lshl_add_u32 %s, %s, 13, %s" % (v(vWQ), v(t4), v(ST + 6)))
e("v_lshrrev_b32 %s, 2, %s" % (v(vK), v(c))); e("v_lshlrev_b32 %s, 8, %s" % (v(vK), v(vK)))
e("v_and_b32 %s, 3, %s" % (v(vT), v(c))); e("v_lshl_add_u32 %s, %s, 2, %s" % (v(vT), v(g), v(vT)))
e("v_lshl_add_u32 %s, %s, 4, %s" % (v(vK), v(vT), v(vK))); e("v_lshl_add_u32 %s, %s, 18, %s" % (v(vK), v(w_), v(vK)))
dq.extend(range(NL + NA + NV))
q_W("wq", 0); q_streamK(0); q_V(0); q_W("wo", 0); q_W("w1", 0); q_W("w2", 0)
q_W("wq", 1); q_streamK(1); q_V(1); q_W("wo", 1); q_W("w1", 1); q_W("w2", 1)
for t in range(NR):
    tag, vo, s_, off, pol = ringq.pop(0); sl = free_slots.pop(0)
    landed[tag] = (sl, load(v(RING + 4 * sl, 4), vo, s_, off, pol))
    if t < P["pre"]: issue_direct(999, 1)
e("v_lshlrev_b32 %s, 4, %s" % (v(vV), v(vL))); e("v_mov_b32 %s, %s" % (v(vLT), v(vV)))
e("v_lshl_add_u32 %s, %s, 18, %s" % (v(vV), v(w_), v(vV)))
e("v_add_u32 %s, s%d, %s" % (v(vLT), sLB, v(vLT)))
e("s_mov_b32 s%d, 3584" % sT0); e("v_mul_lo_u32 %s, %s, s%d" % (v(vW1), v(t4), sT0)); e("v_add_u32 %s, %s, %s" % (v(vW1), v(vW1), v(ST + 6)))
e("v_lshl_add_u32 %s, %s, 10, %s" % (v(vWO), v(g), v(ST + 6))); e("v_lshl_add_u32 %s, %s, 8, %s" % (v(vWO), v(w_), v(vWO)))
e("v_lshlrev_b32 %s, 4, %s" % (v(vXW), v(t3))); e("v_lshl_add_u32 %s, %s, 9, %s" % (v(vXW), v(w_), v(vXW)))
e("v_lshrrev_b32 %s, 5, %s" % (v(vT), v(vL))); e("v_lshl_add_u32 %s, %s, 11, %s" % (v(vPLD), v(vT), v(vXW)))
e("v_add_u32 %s, 0x%x, %s" % (v(vXW), MISC, v(vXW)))
e("v_lshlrev_b32 %s, 4, %s" % (v(vP2), v(c))); e("v_lshl_add_u32 %s, %s, 2, %s" % (v(vP2), v(g), v(vP2)))
e("v_add_u32 %s, 0x%x, %s" % (v(vP2), MISC, v(vP2))); e("v_lshl_add_u32 %s, %s, 9, %s" % (v(vP2X), v(w_), v(vP2)))
e("v_and_b32 %s, 3, %s" % (v(vT), v(c))); e("v_lshl_add_u32 %s, %s, 2, %s" % (v(vT), v(g), v(vT)))
e("v_lshlrev_b32 %s, 5, %s" % (v(vQ), v(vT))); e("v_add_u32 %s, 0x%x, %s" % (v(vQ), MISC, v(vQ)))
e("v_lshlrev_b32 %s, 5, %s" % (v(vLN), v(vL))); e("v_add_u32 %s, 0x%x, %s" % (v(vLN), MISC, v(vLN)))
for k in range(4):
    e("v_mov_b32 %s, 0" % v(vM + k))
    e("v_mov_b32 %s, 0xffff" % v(vT)); e("v_cmp_eq_u32 vcc, %d, %s" % (2 * k, v(c))); nop(2)
    e("v_cndmask_b32 %s, %s, %s, vcc" % (v(vM + k), v(vM + k), v(vT)))
    e("v_mov_b32 %s, 0xffff0000" % v(vT)); e("v_cmp_eq_u32 vcc, %d, %s" % (2 * k + 1, v(c))); nop(2)
    e("v_cndmask_b32 %s, %s, %s, vcc" % (v(vM + k), v(vM + k), v(vT)))
e("v_mov_b32 %s, 0x%x" % (v(ST + 8), FLG)); e("v_mov_b32 %s, 0" % v(ST + 10)); e("v_mov_b32 %s, 0" % v(ST + 11))
e("ds_write_b64 %s, %s" % (v(ST + 8), v(ST + 10, 2)))
stamp(2)
vwait(xid)
stamp(2)
e("v_and_b32 %s, 0xffff0000, %s" % (v(vX + 3), v(vX + 1))); e("v_lshlrev_b32 %s, 16, %s" % (v(vX + 2), v(vX + 1)))
e("v_and_b32 %s, 0xffff0000, %s" % (v(vX + 1), v(vX))); e("v_lshlrev_b32 %s, 16, %s" % (v(vX), v(vX)))

def q_phase(layer):
    if layer == 0: vwait(rst_ids[-1])
    x_to_lds()
    if layer == 0: signal_reset()
    stamp(2); layernorm(); stamp(2)
    tiles = ring_tiles("wq", layer, 32, wp)
    def qhook(i):
        if layer == 0:
            if i == 32 - NR - 1: hold[0] = True
            issue_direct(NL + NA + NV, P["qissue"])
            if i == P["touch0"]: touch(["wo", "w1", "w2"], ST + 14, SC + 12)
    gemv(tiles, D0, hook=qhook); stamp(2)
    write_red(RQ, D0); barrier(); stamp(2); make_qB(); stamp(2)
def pvp(u): return (SC + (u >> 4), 4 * (u & 3) + ((u >> 2) & 3))

q_phase(0)
stamp()
for layer in range(2):
    e("; ---------------- layer %d attention ----------------" % layer)
    deep[0] = False
    qk_phase(layer)
    stamp()
    softmax()
    def vhook(i, layer=layer):
        if i == P["touch2"]: touch(["wo"], ST + 14, ST + 8)
        if i == P["touch3"]: touch(["w1", "w2", "wq"] if layer == 0 else ["w1", "w2"], ST + 14, ST + 8)
    gemv(ring_tiles("V", layer, 256, pvp), D1, hook=vhook)
    stamp()
    combine()
    deep[0] = True
    gemv(ring_tiles("wo", layer, 32, wp), D0, hold_tail=True)
    stamp()
    publish(2 * layer, D0, False)
    stamp()
    gather(2 * layer, 32)
    e("; ---------------- layer %d ffn ----------------" % layer)
    x_to_lds(); layernorm()
    gemv(ring_tiles("w1", layer, 32, wp), D0)
    write_red(RH, D0); barrier(); hidden()
    gemv(ring_tiles("w2", layer, 32, wp), D0, hold_tail=True)
    stamp()
    publish(2 * layer + 1, D0, layer == 1)
    if layer == 0: stamp()
    gather(2 * layer + 1, 14)
    if layer == 0: q_phase(1); stamp()
assert not ringq and not landed
e("v_cvt_pk_bf16_f32 %s, %s, %s" % (v(ST), v(vX), v(vX + 1)))
e("v_cvt_pk_bf16_f32 %s, %s, %s" % (v(ST + 1), v(vX + 2), v(vX + 3)))
e("v_subrev_u32 %s, 0x%x, %s" % (v(ST + 2), MISC, v(vXW)))
e("v_lshrrev_b32 %s, 1, %s" % (v(ST + 2), v(ST + 2)))
exec_lo()
vmem("buffer_store_dwordx2 %s, %s, %s, 0 offen" % (v(ST, 2), v(ST + 2), srd(sOUT)))
vwait_all()
lab("L_end")
if P["stamps"]:
    e("s_cmp_ge_u32 s2, 256"); e("s_cbranch_scc1 L_end2")
    stamp(0)
    e("s_add_u32 s%d, s84, 0x400000" % sWS); e("s_addc_u32 s%d, s85, 0" % (sWS + 1))
    e("s_lshl_b32 s54, s2, 2"); e("s_add_u32 s54, s54, s44"); e("s_lshl_b32 s54, s54, 6")
    e("s_mov_b64 exec, 1")
    for k in range(nst[0]):
        e("v_mov_b32 v1, s%d" % (86 + k)); e("v_mov_b32 v2, s54")
        e("buffer_store_dword v1, v2, %s, 0 offen offset:%d" % (srd(sWS), 4 * k)); e("s_waitcnt vmcnt(0)")
    lab("L_end2")
e("s_endpgm")

hdr = """; Persistent 2-layer decode step: one workgroup per (batch, head); K tiles kept on chip between the layers.
; @launch grid=(256,1,1) block=(256,1,1) lds=%d
.amdgcn_target "amdgcn-amd-amdhsa--gfx950"
.text
.globl %s
.p2align 8
.type %s,@function
%s:
""" % (LDS_BYTES, KN, KN, KN)
ftr = """
.section .rodata,"a"
.p2align 6
.amdhsa_kernel %s
  .amdhsa_next_free_vgpr 512
  .amdhsa_next_free_sgpr 102
  .amdhsa_accum_offset 256
  .amdhsa_group_segment_fixed_size 0
  .amdhsa_kernarg_size 88
  .amdhsa_user_sgpr_count 2
  .amdhsa_user_sgpr_kernarg_segment_ptr 1
  .amdhsa_system_sgpr_workgroup_id_x 1
.end_amdhsa_kernel
""" % KN
open(sys.argv[1], "w").write(hdr + "\n".join(l.strip() if not l.endswith(":") else l for l in out) + ftr)
print("lines", len(out), "NV", NV, "NS", NS, "RET", RET, "LDS", LDS_BYTES)
```

```python
import sys
KN = "interleave_layers__mha_block_cached__dense_activation_silu__decode_kernel"
P = dict(NR=8, NL=36, WIN=8, polK="nt", polV="nt", polK2="nt", polV2="nt", sleep=1, interleave=1, stamps=0, touch1=12, touch2=200, touch3=200, qissue=1, pf=0, pfirst="K", pfw=4, thr=0, thrD=0, tD=0, thr2=0, thrB=0, thr2B=-1, gbit=2, t1a=8, t1b=160, t2a=122, t2b=280, km=2, kk=0, vm=2, vk=0, WS=8, polW="def", polT="def", pre=8, touch0=999)
for a in sys.argv[2:]:
    k, v = a.split("=")
    P[k] = int(v) if v.lstrip("-").isdigit() else v
NR, NL, WIN = P["NR"], P["NL"], P["WIN"]

out = []
def e(s): out.append("    " + s)
def lab(s): out.append(s + ":")
def nop(n): e("s_nop %d" % (n - 1))

sK, sV, sWQ, sWO, sW1, sW2, sWS, sDBG, sX, sOUT = 4, 8, 12, 16, 20, 24, 28, 32, 36, 40
sW, sOFF, sH, sB = 44, 45, 46, 47
sM1, sM2, sM3 = 48, 50, 52
sT0, sT1, sT2, sCNT, sLB = 54, 55, 56, 57, 58
def srd(r): return "s[%d:%d]" % (r, r + 3)
vL, vK, vV, vWQ, vW1, vWO, vPST, vPLD, vLT, vP2, vP2X, vRW, vXW, vQ, vLN, vT = range(16)
vM = 16; vX = 20
RING = 24
POOL = RING + 4 * NR
QB = POOL; SC = POOL + 16; D0 = POOL + 32; D1 = POOL + 36; A0 = POOL + 40; A1 = POOL + 44; ST = POOL + 48
RET = POOL + 64
NV = (256 - RET) // 4
NA = 64
NS = 256 - NL - NA - NV
def v(r, n=1): return "v%d" % r if n == 1 else "v[%d:%d]" % (r, r + n - 1)
def a(r, n=4): return "a[%d:%d]" % (r, r + n - 1)
LW = NL * 1024
MISC = 4 * LW
X1, RQ, RO, RH, ML, FLG = MISC, MISC + 2048, MISC + 4096, MISC + 6144, MISC + 8192, MISC + 8256
LDS_BYTES = MISC + 8320
assert LDS_BYTES <= 163840
CEXP = 1.4426950408889634 / (128 ** 0.5)
import struct
def f2u(x): return struct.unpack("<I", struct.pack("<f", x))[0]

vm = []; vmid = [0]
def vmem(s):
    e(s); vmid[0] += 1; vm.append(vmid[0]); return vmid[0]
def vwait(i):
    if i in vm:
        k = vm.index(i); n = len(vm) - 1 - k
        e("s_waitcnt vmcnt(%d)" % min(n, 63))
        del vm[:k + 1]
def vwait_all():
    e("s_waitcnt vmcnt(0)"); vm.clear()
cur_off = [None]
def soff(x):
    if x == 0: return "0"
    if cur_off[0] != x:
        e("s_mov_b32 s%d, 0x%x" % (sOFF, x)); cur_off[0] = x
    return "s%d" % sOFF
def load(dst, vo, s, off, pol=""):
    so = soff(off & ~4095)
    return vmem("buffer_load_dwordx4 %s, %s, %s, %s offen offset:%d %s" % (dst, v(vo), srd(s), so, off & 4095, pol if pol != "def" else ""))
def load_lds(tile, pol):
    off = tile * 1024
    so = soff(off & ~4095)
    if tile % 4 == 0 or True:
        e("s_add_u32 m0, s%d, 0x%x" % (sLB, off & ~4095)); nop(1)
    return vmem("buffer_load_dwordx4 %s, %s, %s offen offset:%d %s lds" % (v(vK), srd(sK), so, off & 4095, pol if pol != "def" else ""))

nst = [0]
def stamp(lvl=1):
    if not P["stamps"]: return
    if P["stamps"] != lvl and not (lvl == 0 and P["stamps"]): return
    if nst[0] >= 16: return
    e("s_memrealtime s[62:63]"); e("s_waitcnt lgkmcnt(0)"); e("s_mov_b32 s%d, s62" % (86 + nst[0])); nst[0] += 1
ringq = []
free_slots = list(range(NR))
landed = {}
hold = [False]
deep = [False]
thn = [0]
def pump():
    while ringq and free_slots and not hold[0]:
        if ringq[0][0][0] in ("K", "V") and not deep[0] and len(landed) >= P["WS"]: break
        tag, vo, s, off, pol = ringq.pop(0)
        sl = free_slots.pop(0)
        if P["thr"] and tag[0] in ("K", "V"):
            n0 = NL + NA + NV
            idx = tag[2] - n0 if tag[0] == "K" else 256 - n0 + tag[2]
            lo_, hi_ = (P["t1a"], P["t1b"]) if tag[1] == 0 else (P["t2a"], P["t2b"])
            if lo_ <= idx < hi_:
                thn[0] += 1
                e("s_bitcmp1_b32 s%d, %d" % (sB, P["gbit"]))
                e("s_cbranch_scc%d L_th%d" % (0 if tag[1] == 0 else 1, thn[0]))
                e("s_waitcnt vmcnt(%d)" % ((P["thr"] if tag[1] == 0 or not P["thrB"] else P["thrB"]) - 1))
                lab("L_th%d" % thn[0])
                t2_ = P["thr2"] if tag[1] == 0 or P["thr2B"] < 0 else P["thr2B"]
                if t2_: e("s_waitcnt vmcnt(%d)" % (t2_ - 1))
        landed[tag] = (sl, load(v(RING + 4 * sl, 4), vo, s, off, pol))
def ring_get(tag):
    if tag not in landed:
        assert not hold[0]; pump()
    sl, i = landed[tag]; vwait(i); return v(RING + 4 * sl, 4)
def ring_done(tag):
    sl, _ = landed.pop(tag); free_slots.append(sl); pump()

def ksrc(u):
    if u < NL: return ("L", u)
    if u < NL + NA: return ("R", a(4 * (u - NL)))
    if u < NL + NA + NV: return ("R", v(RET + 4 * (u - NL - NA), 4))
    return ("S", None)
def q_streamK(layer):
    for u in range(NL + NA + NV, 256):
        ringq.append((("K", layer, u), vK, sK, u * 1024, (("def" if u % P["km"] < P["kk"] else P["polK"]) if layer == 0 else P["polK2"])))
def q_V(layer):
    for u in range(256):
        ringq.append((("V", layer, u), vV, sV, u * 1024, (("def" if u % P["vm"] < P["vk"] else P["polV"]) if layer == 0 else P["polV2"])))
def q_W(name, layer):
    vo, s, stride = {"wo": (vWO, sWO, 4096), "w2": (vWO, sW2, 4096), "wq": (vWQ, sWQ, 4 * 8192), "w1": (vW1, sW1, 4 * 3584)}[name]
    for t in range(32):
        ringq.append(((name, layer, t), vo, s, t * stride, P["polW"]))

DPP = "row_mask:0xf bank_mask:0xf"
def allreduce(op, x, t):
    for r in (8, 4, 2, 1):
        nop(2); e("%s_dpp %s, %s, %s row_ror:%d %s" % (op, v(x), v(x), v(x), r, DPP))
    for sw in ("v_permlane16_swap_b32", "v_permlane32_swap_b32"):
        e("v_mov_b32 %s, %s" % (v(t), v(x))); nop(2)
        e("%s %s, %s" % (sw, v(x), v(t))); nop(1)
        e("%s %s, %s, %s" % (op, v(x), v(x), v(t)))
def barrier():
    e("s_waitcnt lgkmcnt(0)"); e("s_barrier")
def exec_lo(): e("s_mov_b32 exec_hi, 0")
def exec_all(): e("s_mov_b32 exec_hi, -1")
def buildA(dst, p, j):
    for k in range(4):
        e("v_and_b32_dpp %s, %s, %s row_newbcast:%d %s" % (v(dst + k), v(p), v(vM + k), j, DPP))
def gemv(tiles, acc, hold_tail=False, hook=None):
    n = len(tiles)
    buildA(A0, tiles[0][2], tiles[0][3])
    for i, (get, done, p, j) in enumerate(tiles):
        if hold_tail and i == n - NR: hold[0] = True
        cur = A0 if i % 2 == 0 else A1
        nxt = A1 if i % 2 == 0 else A0
        if i + 1 < n: buildA(nxt, tiles[i + 1][2], tiles[i + 1][3])
        else: nop(2)
        b = get()
        e("v_mfma_f32_16x16x32_bf16 %s, %s, %s, %s" % (v(acc, 4), v(cur, 4), b, "0" if i == 0 else v(acc, 4)))
        done()
        if hook: hook(i)
    nop(8)
def ring_tiles(name, layer, n, pfn):
    r = []
    for t in range(n):
        tag = (name, layer, t); p, j = pfn(t)
        r.append((lambda tag=tag: ring_get(tag), lambda tag=tag: ring_done(tag), p, j))
    return r
def round_bf16_pair(x, y, t):
    e("v_cvt_pk_bf16_f32 %s, %s, %s" % (v(t), v(x), v(y)))
    e("v_lshlrev_b32 %s, 16, %s" % (v(x), v(t)))
    e("v_and_b32 %s, 0xffff0000, %s" % (v(y), v(t)))

def layernorm():
    t = ST
    e("ds_read_b128 %s, %s offset:%d" % (v(t, 4), v(vLN), X1 - MISC))
    e("ds_read_b128 %s, %s offset:%d" % (v(t + 4, 4), v(vLN), X1 - MISC + 16))
    e("ds_read_b32 %s, %s offset:%d" % (v(t + 12), v(vP2X), X1 - MISC))
    e("ds_read_b32 %s, %s offset:%d" % (v(t + 13), v(vP2X), X1 - MISC + 256))
    e("s_waitcnt lgkmcnt(2)")
    s = t + 8
    e("v_add_f32 %s, %s, %s" % (v(s), v(t), v(t + 1)))
    for k in range(2, 8): e("v_add_f32 %s, %s, %s" % (v(s), v(s), v(t + k)))
    allreduce("v_add_f32", s, t + 9)
    e("v_mul_f32 %s, 0x%x, %s" % (v(s), f2u(1.0 / 512), v(s)))
    for k in range(8): e("v_sub_f32 %s, %s, %s" % (v(t + k), v(t + k), v(s)))
    q = t + 10
    e("v_mul_f32 %s, %s, %s" % (v(q), v(t), v(t)))
    for k in range(1, 8): e("v_fmac_f32 %s, %s, %s" % (v(q), v(t + k), v(t + k)))
    allreduce("v_add_f32", q, t + 9)
    e("v_mov_b32 %s, 0x%x" % (v(t + 9), f2u(1e-5)))
    e("v_fmac_f32 %s, 0x%x, %s" % (v(t + 9), f2u(1.0 / 512), v(q)))
    e("v_rsq_f32 %s, %s" % (v(q), v(t + 9)))
    e("s_waitcnt lgkmcnt(0)")
    for k in range(2):
        e("v_sub_f32 %s, %s, %s" % (v(t + 12 + k), v(t + 12 + k), v(s)))
        e("v_mul_f32 %s, %s, %s" % (v(t + 12 + k), v(t + 12 + k), v(q)))
        e("v_cvt_pk_bf16_f32 %s, %s, %s" % (v(SC + k), v(t + 12 + k), v(t + 12 + k)))
    nop(2)
def write_red(area, acc):
    exec_lo()
    e("ds_write_b128 %s, %s offset:%d" % (v(vRW), v(acc, 4), area - MISC))
    exec_all()
def wp(t): return (SC + (t >> 4), t & 15)

def make_qB():
    t = ST
    for w in range(4):
        d = t if w == 0 else t + 8
        e("ds_read_b128 %s, %s offset:%d" % (v(d, 4), v(vQ), RQ - MISC + w * 512))
        e("ds_read_b128 %s, %s offset:%d" % (v(d + 4, 4), v(vQ), RQ - MISC + w * 512 + 16))
        if w > 0:
            e("s_waitcnt lgkmcnt(0)")
            for k in range(8): e("v_add_f32 %s, %s, %s" % (v(t + k), v(t + k), v(t + 8 + k)))
    for k in range(4):
        e("v_cvt_pk_bf16_f32 %s, %s, %s" % (v(t + 8 + k), v(t + 2 * k), v(t + 2 * k + 1)))
    e("v_lshrrev_b32 %s, 2, %s" % (v(t), v(vL)))
    e("v_and_b32 %s, 3, %s" % (v(t), v(t)))
    for tt in range(4):
        e("v_cmp_eq_u32 vcc, %d, %s" % (tt, v(t))); nop(2)
        for k in range(4): e("v_cndmask_b32 %s, 0, %s, vcc" % (v(QB + 4 * tt + k), v(t + 8 + k)))
    nop(2)

dq = []; did = {}
def issue_direct(upto, n=999):
    while dq and dq[0] <= upto and n > 0:
        u = dq.pop(0); k, r = ksrc(u); n -= 1
        if P["thrD"] and n > 900 and u >= P["tD"]:
            thn[0] += 1
            e("s_bitcmp1_b32 s%d, %d" % (sB, P["gbit"]))
            e("s_cbranch_scc0 L_th%d" % thn[0])
            e("s_waitcnt vmcnt(%d)" % (P["thrD"] - 1))
            lab("L_th%d" % thn[0])
        did[u] = load_lds(u, P["polK"]) if k == "L" else load(r, vK, sK, u * 1024, P["polK"])
def touch(names, areg, dreg):
    for nm in names:
        e("s_lshl_b32 s%d, s%d, 2" % (sT0, sB)); e("s_add_u32 s%d, s%d, s%d" % (sT0, sT0, sW))
        sr = srd({"wo": sWO, "w2": sW2, "w1": sW1, "wq": sWQ}[nm])
        if nm in ("wo", "w2"):
            e("s_lshl_b32 s%d, s%d, 12" % (sT0, sT0))
            e("v_lshlrev_b32 %s, 4, %s" % (v(areg), v(vL)))
            for k in range(4):
                vmem("buffer_load_dwordx4 %s, %s, %s, s%d offen offset:%d %s" % (v(dreg, 4), v(areg), sr, sT0, 1024 * k, P["polT"].replace("def", "")))
        else:
            st = 8192 if nm == "wq" else 3584
            e("s_mul_i32 s%d, s%d, %d" % (sT0, sT0, 16 * st))
            e("v_lshrrev_b32 %s, 4, %s" % (v(areg), v(vL))); e("v_mul_u32_u24 %s, %d, %s" % (v(areg), st, v(areg)))
            e("v_and_b32 %s, 15, %s" % (v(vT), v(vL))); e("v_lshl_add_u32 %s, %s, 4, %s" % (v(areg), v(vT), v(areg)))
            for k in range(4):
                vmem("buffer_load_dwordx4 %s, %s, %s, s%d offen %s" % (v(dreg, 4), v(areg), sr, sT0, P["polT"].replace("def", "")))
                if k < 3: e("s_add_u32 s%d, s%d, %d" % (sT0, sT0, 4 * st))
def qk_phase(layer):
    groups = list(range(64))
    def srcs(gi): return [ksrc(4 * gi + t)[0] for t in range(4)]
    if layer == 1 and P["interleave"]:
        st = [g for g in groups if "S" in srcs(g)]; rt = [g for g in groups if "S" not in srcs(g)]
        order = []
        ns, nr_ = len(st), len(rt); ri = 0
        for k, g in enumerate(st):
            order.append(g)
            while ri * ns < (k + 1) * nr_: order.append(rt[ri]); ri += 1
        order += rt[ri:]
    else:
        order = groups
    if layer == 1: dq.clear()
    written = set()
    def reduce(gi, D):
        G, i = gi >> 2, gi & 3
        tmp = A0
        e("v_mov_b32_dpp %s, %s quad_perm:[0,0,0,0] %s" % (v(tmp), v(D), DPP))
        for k in (1, 2, 3):
            e("v_add_f32_dpp %s, %s, %s quad_perm:[%d,%d,%d,%d] %s" % (v(tmp), v(D + k), v(tmp), k, k, k, k, DPP))
        m = {0: 60, 1: sM1, 2: sM2, 3: sM3}[i]
        if G not in written:
            e("v_mov_b32 %s, %s" % (v(SC + G), v(tmp))); written.add(G)
        else:
            e("v_cndmask_b32 %s, %s, %s, s[%d:%d]" % (v(SC + G), v(SC + G), v(tmp), m, m + 1))
    prev = None
    staged = {}
    def stage(gi):
        for t in range(4):
            u = 4 * gi + t
            if ksrc(u)[0] == "L":
                if layer == 0: vwait(did[u])
                e("ds_read_b128 %s, %s offset:%d" % (v(ST + 4 * t, 4), v(vLT), u * 1024))
        staged[gi] = True
    for n, gi in enumerate(order):
        D = D0 if n % 2 == 0 else D1
        if "L" in srcs(gi) and gi not in staged: stage(gi)
        if "L" in srcs(gi): e("s_waitcnt lgkmcnt(0)")
        for t in range(4):
            u = 4 * gi + t; k, r = ksrc(u)
            if layer == 0:
                issue_direct(u + WIN)
                if not dq and hold[0]: hold[0] = False; pump()
            if k == "L": b = v(ST + 4 * t, 4)
            elif k == "R":
                if layer == 0: vwait(did[u])
                b = r
            else: b = ring_get(("K", layer, u))
            e("v_mfma_f32_16x16x32_bf16 %s, %s, %s, %s" % (v(D, 4), b, v(QB + 4 * t, 4), "0" if t == 0 else v(D, 4)))
            if k == "S": ring_done(("K", layer, u))
        if n + 1 < len(order) and "L" in srcs(order[n + 1]): stage(order[n + 1])
        if prev is not None:
            nop(4); reduce(*prev)
        pass
        prev = (gi, D)
    nop(8); reduce(*prev)

def softmax():
    m, t = D0, D0 + 1
    e("v_max3_f32 %s, %s, %s, %s" % (v(m), v(SC), v(SC + 1), v(SC + 2)))
    for k in range(3, 15, 2): e("v_max3_f32 %s, %s, %s, %s" % (v(m), v(m), v(SC + k), v(SC + k + 1)))
    e("v_max_f32 %s, %s, %s" % (v(m), v(m), v(SC + 15)))
    allreduce("v_max_f32", m, t)
    e("s_mov_b32 s%d, 0x%x" % (sT0, f2u(CEXP)))
    e("v_mul_f32 %s, s%d, %s" % (v(t), sT0, v(m)))
    for k in range(16): e("v_fma_f32 %s, %s, s%d, -%s" % (v(SC + k), v(SC + k), sT0, v(t)))
    for k in range(16): e("v_exp_f32 %s, %s" % (v(SC + k), v(SC + k)))
    l = D0 + 2
    nop(1)
    e("v_add_f32 %s, %s, %s" % (v(l), v(SC), v(SC + 1)))
    for k in range(2, 16): e("v_add_f32 %s, %s, %s" % (v(l), v(l), v(SC + k)))
    for k in range(16): e("v_cvt_pk_bf16_f32 %s, %s, %s" % (v(SC + k), v(SC + k), v(SC + k)))
    allreduce("v_add_f32", l, t)
    e("v_mul_f32 %s, s%d, %s" % (v(vT), sT0, v(m)))
    e("v_mov_b32 %s, %s" % (v(ST + 13), v(l)))
    e("v_mov_b32 %s, %s" % (v(ST + 12), v(vT)))
    nop(2)

def combine():
    write_red(RO, D1)
    e("v_mov_b32 %s, s%d" % (v(vT), sW)); e("v_lshlrev_b32 %s, 3, %s" % (v(vT), v(vT)))
    e("v_add_u32 %s, 0x%x, %s" % (v(vT), ML, v(vT)))
    e("ds_write_b64 %s, %s" % (v(vT), v(ST + 12, 2)))
    barrier()
    t = ST
    e("v_mov_b32 %s, 0x%x" % (v(vT), ML))
    e("ds_read_b128 %s, %s" % (v(t, 4), v(vT)))
    e("ds_read_b128 %s, %s offset:16" % (v(t + 4, 4), v(vT)))
    for w in range(4):
        for G in range(2):
            e("ds_read_b32 %s, %s offset:%d" % (v(QB + 2 * w + G), v(vP2), RO - MISC + w * 512 + G * 256))
    e("s_waitcnt lgkmcnt(8)")
    M = t + 8
    e("v_max3_f32 %s, %s, %s, %s" % (v(M), v(t), v(t + 2), v(t + 4)))
    e("v_max_f32 %s, %s, %s" % (v(M), v(M), v(t + 6)))
    for w in range(4): e("v_sub_f32 %s, %s, %s" % (v(t + 2 * w), v(t + 2 * w), v(M)))
    for w in range(4): e("v_exp_f32 %s, %s" % (v(t + 2 * w), v(t + 2 * w)))
    nop(1)
    e("v_mul_f32 %s, %s, %s" % (v(M), v(t), v(t + 1)))
    for w in range(1, 4): e("v_fmac_f32 %s, %s, %s" % (v(M), v(t + 2 * w), v(t + 2 * w + 1)))
    e("v_rcp_f32 %s, %s" % (v(M), v(M)))
    e("s_waitcnt lgkmcnt(0)")
    for G in range(2):
        e("v_mul_f32 %s, %s, %s" % (v(t + 10 + G), v(QB + G), v(t)))
        for w in range(1, 4): e("v_fmac_f32 %s, %s, %s" % (v(t + 10 + G), v(QB + 2 * w + G), v(t + 2 * w)))
        e("v_mul_f32 %s, %s, %s" % (v(t + 10 + G), v(t + 10 + G), v(M)))
        e("v_cvt_pk_bf16_f32 %s, %s, %s" % (v(SC + G), v(t + 10 + G), v(t + 10 + G)))
    nop(2)

def hidden():
    t = ST
    for w in range(4):
        for G in range(2):
            e("ds_read_b32 %s, %s offset:%d" % (v(t + 2 * w + G), v(vP2), RH - MISC + w * 512 + G * 256))
    e("s_waitcnt lgkmcnt(0)")
    for G in range(2):
        for w in range(1, 4): e("v_add_f32 %s, %s, %s" % (v(t + G), v(t + G), v(t + 2 * w + G)))
    round_bf16_pair(t, t + 1, t + 2)
    for G in range(2):
        e("v_mul_f32 %s, 0x%x, %s" % (v(t + 4 + G), f2u(-1.4426950408889634), v(t + G)))
    for G in range(2): e("v_exp_f32 %s, %s" % (v(t + 4 + G), v(t + 4 + G)))
    nop(1)
    for G in range(2): e("v_add_f32 %s, 1.0, %s" % (v(t + 4 + G), v(t + 4 + G)))
    for G in range(2): e("v_rcp_f32 %s, %s" % (v(t + 4 + G), v(t + 4 + G)))
    nop(1)
    for G in range(2):
        e("v_mul_f32 %s, %s, %s" % (v(t + G), v(t + G), v(t + 4 + G)))
        e("v_cvt_pk_bf16_f32 %s, %s, %s" % (v(SC + G), v(t + G), v(t + G)))
    nop(2)

lbl = [0]
SPIN = 0x40000
def publish(ph, acc, last):
    npart = 32 if ph % 2 == 0 else 14
    e("s_mov_b32 s%d, 0xfffffffe" % sT0)
    for k in range(4): e("v_min_u32 %s, s%d, %s" % (v(acc + k), sT0, v(acc + k)))
    so = soff(65536 * ph)
    e("v_add_u32 %s, s%d, %s" % (v(vT), sT2, v(vPST)))
    vmem("buffer_store_dwordx4 %s, %s, %s, %s offen sc1" % (v(acc, 4), v(vT), srd(sWS), so))
    if last:
        e("s_cmp_lg_u32 s%d, 31" % sH); e("s_cbranch_scc1 L_end")
    hold[0] = False; pump()
    lbl[0] += 1; n = lbl[0]
    stamp(3)
    pf = P["pf"] and ph < 2 and (ph == 0 or P["pf"] > 1)
    e("s_cmp_lg_u32 s%d, 0" % sW); e("s_cbranch_scc1 L_%s%d" % ("pf" if pf else "skip", n))
    e("s_mov_b32 s%d, 0" % sCNT)
    if ph == 0:
        e("v_mov_b32 %s, s%d" % (v(ST), sB)); e("v_lshlrev_b32 %s, 2, %s" % (v(ST), v(ST)))
        e("s_mov_b64 exec, 1")
        lab("L_rst%d" % n)
        e("buffer_load_dword %s, %s, %s, 0 offen sc1" % (v(ST + 2), v(ST), srd(sDBG)))
        e("s_waitcnt vmcnt(0)")
        e("v_readfirstlane_b32 s%d, %s" % (sT0, v(ST + 2)))
        e("s_add_u32 s%d, s%d, 1" % (sCNT, sCNT))
        e("s_cmp_ge_u32 s%d, 32" % sT0); e("s_cbranch_scc1 L_rstd%d" % n)
        e("s_cmp_ge_u32 s%d, 0x%x" % (sCNT, SPIN)); e("s_cbranch_scc1 L_rstd%d" % n)
        e("s_sleep 8"); e("s_branch L_rst%d" % n)
        lab("L_rstd%d" % n)
        e("s_mov_b64 exec, -1")
    e("v_lshlrev_b32 %s, 11, %s" % (v(ST), v(vL))); e("v_add_u32 %s, 0x%x, %s" % (v(ST), ph * 65536 + 2044, v(ST)))
    e("s_mov_b32 exec_lo, 0x%x" % ((1 << npart) - 1)); e("s_mov_b32 exec_hi, 0")
    lab("L_poll%d" % n)
    e("buffer_load_dword %s, %s, %s, 0 offen sc1" % (v(ST + 2), v(ST), srd(sWS)))
    e("s_waitcnt vmcnt(0)")
    e("v_cmp_eq_u32 vcc, -1, %s" % v(ST + 2))
    e("s_add_u32 s%d, s%d, 1" % (sCNT, sCNT))
    e("s_nop 3")
    e("s_and_b64 exec, exec, vcc"); e("s_cbranch_scc0 L_done%d" % n)
    e("s_cmp_ge_u32 s%d, 0x%x" % (sCNT, SPIN)); e("s_cbranch_scc1 L_done%d" % n)
    e("s_sleep %d" % P["sleep"]); e("s_branch L_poll%d" % n)
    lab("L_done%d" % n)
    e("s_mov_b64 exec, -1")
    if pf:
        e("v_mov_b32 %s, 0x%x" % (v(ST), FLG + 4 * ph)); e("v_mov_b32 %s, 1" % v(ST + 1))
        e("ds_write_b32 %s, %s" % (v(ST), v(ST + 1))); e("s_waitcnt lgkmcnt(0)")
        e("s_branch L_skip%d" % n)
        lab("L_pf%d" % n)
        isK = (ph == 0) == (P["pfirst"] == "K")
        km, kk = (P["km"], P["kk"]) if isK else (P["vm"], P["vk"])
        t0 = ((NL + NA + NV + km - 1) // km) * km if isK else 0
        per = km - kk
        nper = (256 - t0) // km
        sr = "s[72:75]" if isK else "s[76:79]"
        e("v_lshlrev_b32 %s, 4, %s" % (v(ST), v(vL))); e("v_mov_b32 %s, 0x%x" % (v(ST + 1), FLG + 4 * ph))
        e("s_sub_u32 s%d, s%d, 1" % (sCNT, sW))
        e("s_mov_b32 s59, s%d" % sH)
        lab("L_pfl%d" % n)
        e("ds_read_b32 %s, %s" % (v(ST + 2), v(ST + 1))); e("s_waitcnt lgkmcnt(0)")
        e("v_readfirstlane_b32 s%d, %s" % (sT0, v(ST + 2)))
        e("s_cmp_eq_u32 s%d, 1" % sT0); e("s_cbranch_scc1 L_skip%d" % n)
        e("s_cmp_ge_u32 s%d, %d" % (sCNT, nper * per)); e("s_cbranch_scc1 L_skip%d" % n)
        if per == 1: e("s_mul_i32 s%d, s%d, %d" % (sT0, sCNT, km)); e("s_add_u32 s%d, s%d, %d" % (sT0, sT0, t0 + kk))
        elif per == 2:
            e("s_lshr_b32 s%d, s%d, 1" % (sT0, sCNT)); e("s_mul_i32 s%d, s%d, %d" % (sT0, sT0, km))
            e("s_and_b32 s%d, s%d, 1" % (sT1, sCNT)); e("s_add_u32 s%d, s%d, s%d" % (sT0, sT0, sT1)); e("s_add_u32 s%d, s%d, %d" % (sT0, sT0, t0 + kk))
        else: assert False
        e("s_lshl_b32 s%d, s%d, 10" % (sT0, sT0))
        e("s_and_b32 s%d, s59, 31" % sT1); e("s_lshl_b32 s%d, s%d, 20" % (sT1, sT1)); e("s_add_u32 s%d, s%d, s%d" % (sT0, sT0, sT1))
        for w in range(4):
            e("buffer_load_dwordx4 %s, %s, %s, s%d offen" % (v(ST + 4, 4), v(ST), sr, sT0))
            if w < 3: e("s_add_u32 s%d, s%d, 0x40000" % (sT0, sT0))
        e("s_add_u32 s%d, s%d, 3" % (sCNT, sCNT)); e("s_add_u32 s59, s59, 1")
        e("s_waitcnt vmcnt(%d)" % P["pfw"])
        e("s_branch L_pfl%d" % n)
    lab("L_skip%d" % n)
    if pf: e("s_waitcnt vmcnt(0)")
    e("s_barrier")

def gather(ph, npart):
    lbl[0] += 1; n = lbl[0]
    e("s_mov_b32 s%d, 0" % sCNT)
    lab("L_g%d" % n)
    cur_off[0] = None
    ids = []
    for i in range(npart // 2):
        off = ph * 65536 + i * 4096
        so = soff(off)
        ids.append(vmem("buffer_load_dwordx4 %s, %s, %s, %s offen sc1" % (v(POOL + 4 * i, 4), v(vPLD), srd(sWS), so)))
    for i in range(npart // 2):
        vwait(ids[i])
        q = POOL + 4 * i
        if i == 0: e("v_max3_u32 %s, %s, %s, %s" % (v(vT), v(q), v(q + 1), v(q + 2))); e("v_max_u32 %s, %s, %s" % (v(vT), v(vT), v(q + 3)))
        else:
            e("v_max3_u32 %s, %s, %s, %s" % (v(vT), v(vT), v(q), v(q + 1))); e("v_max3_u32 %s, %s, %s, %s" % (v(vT), v(vT), v(q + 2), v(q + 3)))
            for k in range(4): e("v_add_f32 %s, %s, %s" % (v(POOL + k), v(POOL + k), v(q + k)))
    e("v_cmp_eq_u32 vcc, -1, %s" % v(vT))
    e("s_add_u32 s%d, s%d, 1" % (sCNT, sCNT))
    e("s_nop 3")
    e("s_cbranch_vccz L_gd%d" % n)
    e("s_cmp_ge_u32 s%d, 0x%x" % (sCNT, SPIN)); e("s_cbranch_scc1 L_gd%d" % n)
    e("s_sleep 2"); e("s_branch L_g%d" % n)
    lab("L_gd%d" % n)
    stamp(3)
    t = POOL + 4
    for k in range(4): e("v_mov_b32 %s, %s" % (v(t + k), v(POOL + k)))
    nop(2)
    for k in range(4): e("v_permlane32_swap_b32 %s, %s" % (v(POOL + k), v(t + k)))
    nop(1)
    for k in range(4): e("v_add_f32 %s, %s, %s" % (v(POOL + k), v(POOL + k), v(t + k)))
    round_bf16_pair(POOL, POOL + 1, t); round_bf16_pair(POOL + 2, POOL + 3, t)
    for k in range(4): e("v_add_f32 %s, %s, %s" % (v(vX + k), v(vX + k), v(POOL + k)))
    round_bf16_pair(vX, vX + 1, t); round_bf16_pair(vX + 2, vX + 3, t)
rst_ids = []
def reset_slots():
    for k in range(4): e("v_mov_b32 %s, -1" % v(SC + 8 + k))
    e("v_add_u32 %s, s%d, %s" % (v(vT), sT2, v(vPST)))
    for ph in range(4):
        rst_ids.append(vmem("buffer_store_dwordx4 %s, %s, %s, %s offen sc1" % (v(SC + 8, 4), v(vT), srd(sWS), soff(65536 * ph))))
def signal_reset():
    lbl[0] += 1; n = lbl[0]
    e("s_cmp_lg_u32 s%d, 0" % sW); e("s_cbranch_scc1 L_sr%d" % n)
    e("s_mov_b64 exec, 1")
    e("v_mov_b32 %s, s%d" % (v(ST), sB)); e("v_lshlrev_b32 %s, 2, %s" % (v(ST), v(ST)))
    e("v_mov_b32 %s, 1" % v(ST + 1))
    e("buffer_atomic_add %s, %s, %s, 0 offen" % (v(ST + 1), v(ST), srd(sDBG)))
    e("s_nop 1")
    e("s_mov_b64 exec, -1")
    lab("L_sr%d" % n)
def x_to_lds():
    e("ds_write_b128 %s, %s offset:%d" % (v(vXW), v(vX, 4), X1 - MISC))
    barrier()

e("s_cmp_ge_u32 s2, 256"); e("s_cbranch_scc1 L_end")
stamp(0)
e("s_load_dwordx16 s[64:79], s[0:1], 0")
e("s_load_dwordx4 s[80:83], s[0:1], 64")
e("s_load_dwordx2 s[84:85], s[0:1], 80")
e("v_lshrrev_b32 %s, 6, v0" % v(vT)); nop(1)
e("v_readfirstlane_b32 s%d, %s" % (sW, v(vT)))
e("v_and_b32 %s, 63, v0" % v(vL))
e("s_and_b32 s%d, s2, 31" % sH); e("s_lshr_b32 s%d, s2, 5" % sB)
e("s_waitcnt lgkmcnt(0)")
stamp(2)
def mk(srdr, pair, off_s, shift, size, mul=None):
    if mul is None:
        e("s_lshl_b32 s%d, s%d, %d" % (sT0, off_s, shift))
        e("s_lshr_b32 s%d, s%d, %d" % (sT1, off_s, 32 - shift))
        e("s_add_u32 s%d, s%d, s%d" % (srdr, pair, sT0)); e("s_addc_u32 s%d, s%d, s%d" % (srdr + 1, pair + 1, sT1))
    e("s_mov_b32 s%d, 0x%x" % (srdr + 2, size)); e("s_mov_b32 s%d, 0x20000" % (srdr + 3))
mk(sK, 66, 2, 20, 1 << 20); mk(sV, 68, 2, 20, 1 << 20)
mk(sX, 64, sB, 10, 1024); mk(sOUT, 80, sB, 10, 1024)
mk(sWS, 84, sB, 18, 1 << 18)
mk(sWQ, 70, sH, 8, 0); e("s_sub_u32 s%d, 0x400000, s%d" % (sWQ + 2, sT0))
mk(sWO, 72, sH, 17, 1 << 17)
e("s_min_u32 s%d, s%d, 13" % (sT2, sH))
mk(sW1, 76, sT2, 8, 0); e("s_sub_u32 s%d, 0x%x, s%d" % (sW1 + 2, 512 * 3584, sT0))
mk(sW2, 78, sT2, 17, 1 << 17)
e("s_cmp_lt_u32 s%d, 14" % sH)
e("s_cselect_b32 s%d, s%d, 0" % (sW1 + 2, sW1 + 2)); e("s_cselect_b32 s%d, s%d, 0" % (sW2 + 2, sW2 + 2))
e("s_mov_b32 s%d, s82" % sDBG); e("s_mov_b32 s%d, s83" % (sDBG + 1)); e("s_mov_b32 s%d, 256" % (sDBG + 2)); e("s_mov_b32 s%d, 0x20000" % (sDBG + 3))
e("s_lshl_b32 s%d, s%d, 11" % (sT2, sH))
e("s_lshl_b32 s%d, s%d, 25" % (sT0, sB)); e("s_lshr_b32 s%d, s%d, 7" % (sT1, sB))
e("s_add_u32 s72, s66, s%d" % sT0); e("s_addc_u32 s73, s67, s%d" % sT1); e("s_mov_b32 s74, 0x2000000"); e("s_mov_b32 s75, 0x20000")
e("s_add_u32 s76, s68, s%d" % sT0); e("s_addc_u32 s77, s69, s%d" % sT1); e("s_mov_b32 s78, 0x2000000"); e("s_mov_b32 s79, 0x20000")
e("s_mul_i32 s%d, s%d, %d" % (sLB, sW, LW))
for m, val in ((60, 0x11111111), (sM1, 0x22222222), (sM2, 0x44444444), (sM3, 0x88888888)):
    e("s_mov_b32 s%d, 0x%x" % (m, val)); e("s_mov_b32 s%d, 0x%x" % (m + 1, val))
c, g, w_, t3, t4 = ST, ST + 1, ST + 2, ST + 3, ST + 4
e("v_and_b32 %s, 15, %s" % (v(c), v(vL))); e("v_lshrrev_b32 %s, 4, %s" % (v(g), v(vL)))
e("v_mov_b32 %s, s%d" % (v(w_), sW))
e("v_and_b32 %s, 31, %s" % (v(t3), v(vL)))
e("v_lshlrev_b32 %s, 3, %s" % (v(t4), v(t3))); e("v_lshl_add_u32 %s, %s, 8, %s" % (v(ST + 5), v(w_), v(t4)))
xid = vmem("buffer_load_dwordx2 %s, %s, %s, 0 offen" % (v(vX, 2), v(ST + 5), srd(sX)))
e("v_lshlrev_b32 %s, 5, %s" % (v(vPST), v(c))); e("v_lshl_add_u32 %s, %s, 4, %s" % (v(vPST), v(g), v(vPST)))
e("v_lshl_add_u32 %s, %s, 9, %s" % (v(vPST), v(w_), v(vPST)))
e("v_add_u32 %s, 0x%x, %s" % (v(vRW), MISC, v(vPST)))
e("v_mov_b32 %s, 0x80000000" % v(vT)); e("v_cmp_gt_u32 vcc, 32, %s" % v(vL)); nop(2)
e("v_cndmask_b32 %s, %s, %s, vcc" % (v(vPST), v(vT), v(vPST)))
reset_slots()
e("v_lshl_add_u32 %s, %s, 7, %s" % (v(t4), v(w_), v(g)))
e("v_lshlrev_b32 %s, 4, %s" % (v(ST + 6), v(c)))
e("v_lshl_add_u32 %s, %s, 13, %s" % (v(vWQ), v(t4), v(ST + 6)))
e("v_lshrrev_b32 %s, 2, %s" % (v(vK), v(c))); e("v_lshlrev_b32 %s, 8, %s" % (v(vK), v(vK)))
e("v_and_b32 %s, 3, %s" % (v(vT), v(c))); e("v_lshl_add_u32 %s, %s, 2, %s" % (v(vT), v(g), v(vT)))
e("v_lshl_add_u32 %s, %s, 4, %s" % (v(vK), v(vT), v(vK))); e("v_lshl_add_u32 %s, %s, 18, %s" % (v(vK), v(w_), v(vK)))
dq.extend(range(NL + NA + NV))
q_W("wq", 0); q_streamK(0); q_V(0); q_W("wo", 0); q_W("w1", 0); q_W("w2", 0)
q_W("wq", 1); q_streamK(1); q_V(1); q_W("wo", 1); q_W("w1", 1); q_W("w2", 1)
for t in range(NR):
    tag, vo, s_, off, pol = ringq.pop(0); sl = free_slots.pop(0)
    landed[tag] = (sl, load(v(RING + 4 * sl, 4), vo, s_, off, pol))
    if t < P["pre"]: issue_direct(999, 1)
e("v_lshlrev_b32 %s, 4, %s" % (v(vV), v(vL))); e("v_mov_b32 %s, %s" % (v(vLT), v(vV)))
e("v_lshl_add_u32 %s, %s, 18, %s" % (v(vV), v(w_), v(vV)))
e("v_add_u32 %s, s%d, %s" % (v(vLT), sLB, v(vLT)))
e("s_mov_b32 s%d, 3584" % sT0); e("v_mul_lo_u32 %s, %s, s%d" % (v(vW1), v(t4), sT0)); e("v_add_u32 %s, %s, %s" % (v(vW1), v(vW1), v(ST + 6)))
e("v_lshl_add_u32 %s, %s, 10, %s" % (v(vWO), v(g), v(ST + 6))); e("v_lshl_add_u32 %s, %s, 8, %s" % (v(vWO), v(w_), v(vWO)))
e("v_lshlrev_b32 %s, 4, %s" % (v(vXW), v(t3))); e("v_lshl_add_u32 %s, %s, 9, %s" % (v(vXW), v(w_), v(vXW)))
e("v_lshrrev_b32 %s, 5, %s" % (v(vT), v(vL))); e("v_lshl_add_u32 %s, %s, 11, %s" % (v(vPLD), v(vT), v(vXW)))
e("v_add_u32 %s, 0x%x, %s" % (v(vXW), MISC, v(vXW)))
e("v_lshlrev_b32 %s, 4, %s" % (v(vP2), v(c))); e("v_lshl_add_u32 %s, %s, 2, %s" % (v(vP2), v(g), v(vP2)))
e("v_add_u32 %s, 0x%x, %s" % (v(vP2), MISC, v(vP2))); e("v_lshl_add_u32 %s, %s, 9, %s" % (v(vP2X), v(w_), v(vP2)))
e("v_and_b32 %s, 3, %s" % (v(vT), v(c))); e("v_lshl_add_u32 %s, %s, 2, %s" % (v(vT), v(g), v(vT)))
e("v_lshlrev_b32 %s, 5, %s" % (v(vQ), v(vT))); e("v_add_u32 %s, 0x%x, %s" % (v(vQ), MISC, v(vQ)))
e("v_lshlrev_b32 %s, 5, %s" % (v(vLN), v(vL))); e("v_add_u32 %s, 0x%x, %s" % (v(vLN), MISC, v(vLN)))
for k in range(4):
    e("v_mov_b32 %s, 0" % v(vM + k))
    e("v_mov_b32 %s, 0xffff" % v(vT)); e("v_cmp_eq_u32 vcc, %d, %s" % (2 * k, v(c))); nop(2)
    e("v_cndmask_b32 %s, %s, %s, vcc" % (v(vM + k), v(vM + k), v(vT)))
    e("v_mov_b32 %s, 0xffff0000" % v(vT)); e("v_cmp_eq_u32 vcc, %d, %s" % (2 * k + 1, v(c))); nop(2)
    e("v_cndmask_b32 %s, %s, %s, vcc" % (v(vM + k), v(vM + k), v(vT)))
e("v_mov_b32 %s, 0x%x" % (v(ST + 8), FLG)); e("v_mov_b32 %s, 0" % v(ST + 10)); e("v_mov_b32 %s, 0" % v(ST + 11))
e("ds_write_b64 %s, %s" % (v(ST + 8), v(ST + 10, 2)))
stamp(2)
vwait(xid)
stamp(2)
e("v_and_b32 %s, 0xffff0000, %s" % (v(vX + 3), v(vX + 1))); e("v_lshlrev_b32 %s, 16, %s" % (v(vX + 2), v(vX + 1)))
e("v_and_b32 %s, 0xffff0000, %s" % (v(vX + 1), v(vX))); e("v_lshlrev_b32 %s, 16, %s" % (v(vX), v(vX)))

def q_phase(layer):
    if layer == 0: vwait(rst_ids[-1])
    x_to_lds()
    if layer == 0: signal_reset()
    stamp(2); layernorm(); stamp(2)
    tiles = ring_tiles("wq", layer, 32, wp)
    def qhook(i):
        if layer == 0:
            if i == 32 - NR - 1: hold[0] = True
            issue_direct(NL + NA + NV, P["qissue"])
            if i == P["touch0"]: touch(["wo", "w1", "w2"], ST + 14, SC + 12)
    gemv(tiles, D0, hook=qhook); stamp(2)
    write_red(RQ, D0); barrier(); stamp(2); make_qB(); stamp(2)
def pvp(u): return (SC + (u >> 4), 4 * (u & 3) + ((u >> 2) & 3))

q_phase(0)
stamp()
for layer in range(2):
    e("; ---------------- layer %d attention ----------------" % layer)
    deep[0] = False
    qk_phase(layer)
    stamp()
    softmax()
    def vhook(i, layer=layer):
        if i == P["touch2"]: touch(["wo"], ST + 14, ST + 8)
        if i == P["touch3"]: touch(["w1", "w2", "wq"] if layer == 0 else ["w1", "w2"], ST + 14, ST + 8)
    gemv(ring_tiles("V", layer, 256, pvp), D1, hook=vhook)
    stamp()
    combine()
    deep[0] = True
    gemv(ring_tiles("wo", layer, 32, wp), D0, hold_tail=True)
    stamp()
    publish(2 * layer, D0, False)
    stamp()
    gather(2 * layer, 32)
    e("; ---------------- layer %d ffn ----------------" % layer)
    x_to_lds(); layernorm()
    gemv(ring_tiles("w1", layer, 32, wp), D0)
    write_red(RH, D0); barrier(); hidden()
    gemv(ring_tiles("w2", layer, 32, wp), D0, hold_tail=True)
    stamp()
    publish(2 * layer + 1, D0, layer == 1)
    if layer == 0: stamp()
    gather(2 * layer + 1, 14)
    if layer == 0: q_phase(1); stamp()
assert not ringq and not landed
e("v_cvt_pk_bf16_f32 %s, %s, %s" % (v(ST), v(vX), v(vX + 1)))
e("v_cvt_pk_bf16_f32 %s, %s, %s" % (v(ST + 1), v(vX + 2), v(vX + 3)))
e("v_subrev_u32 %s, 0x%x, %s" % (v(ST + 2), MISC, v(vXW)))
e("v_lshrrev_b32 %s, 1, %s" % (v(ST + 2), v(ST + 2)))
exec_lo()
vmem("buffer_store_dwordx2 %s, %s, %s, 0 offen" % (v(ST, 2), v(ST + 2), srd(sOUT)))
vwait_all()
lab("L_end")
if P["stamps"]:
    e("s_cmp_ge_u32 s2, 256"); e("s_cbranch_scc1 L_end2")
    stamp(0)
    e("s_add_u32 s%d, s84, 0x400000" % sWS); e("s_addc_u32 s%d, s85, 0" % (sWS + 1))
    e("s_lshl_b32 s54, s2, 2"); e("s_add_u32 s54, s54, s44"); e("s_lshl_b32 s54, s54, 6")
    e("s_mov_b64 exec, 1")
    for k in range(nst[0]):
        e("v_mov_b32 v1, s%d" % (86 + k)); e("v_mov_b32 v2, s54")
        e("buffer_store_dword v1, v2, %s, 0 offen offset:%d" % (srd(sWS), 4 * k)); e("s_waitcnt vmcnt(0)")
    lab("L_end2")
e("s_endpgm")

hdr = """; Persistent 2-layer decode step: one workgroup per (batch, head); K tiles kept on chip between the layers.
; @launch grid=(256,1,1) block=(256,1,1) lds=%d
.amdgcn_target "amdgcn-amd-amdhsa--gfx950"
.text
.globl %s
.p2align 8
.type %s,@function
%s:
""" % (LDS_BYTES, KN, KN, KN)
ftr = """
.section .rodata,"a"
.p2align 6
.amdhsa_kernel %s
  .amdhsa_next_free_vgpr 512
  .amdhsa_next_free_sgpr 102
  .amdhsa_accum_offset 256
  .amdhsa_group_segment_fixed_size 0
  .amdhsa_kernarg_size 88
  .amdhsa_user_sgpr_count 2
  .amdhsa_user_sgpr_kernarg_segment_ptr 1
  .amdhsa_system_sgpr_workgroup_id_x 1
.end_amdhsa_kernel
""" % KN
open(sys.argv[1], "w").write(hdr + "\n".join(l.strip() if not l.endswith(":") else l for l in out) + ftr)
print("lines", len(out), "NV", NV, "NS", NS, "RET", RET, "LDS", LDS_BYTES)
```
